```python
import torch

def _softmax(x, axis=-1):
    return torch.softmax(x, dim=axis)
def _gelu(x):
    return torch.nn.functional.gelu(x, approximate="tanh")
def _silu(x):
    return torch.nn.functional.silu(x)
def _sigmoid(x):
    return torch.sigmoid(x)
def _layernorm(x, axis=-1, eps=1e-5):
    m = x.mean(dim=axis, keepdim=True)
    v = x.var(dim=axis, keepdim=True, unbiased=False)
    return (x - m) / torch.sqrt(v + eps)
def _scatter_add(tgt, idx, src, axis=0):
    return tgt.clone().index_add_(axis, idx, src)
def _segment_sum(src, seg, n):
    out = torch.zeros((n,) + src.shape[1:], dtype=src.dtype)
    return out.index_add_(0, seg, src)
def _pad(x, pw):
    flat = tuple(v for pair in reversed(pw) for v in pair)
    return torch.nn.functional.pad(x, flat)

kernel_name = 'parallel_sum__mha_block_cached__glu_gated_reglu__decode'

def setup_inputs():

    _w = (lambda a: (lambda t: t.to(torch.bfloat16) if t.is_floating_point() else t)(torch.as_tensor(a)))
    def _A_setup():
        B, Sq, D = 1, 1, 512
        H, Sk, Dh = 32, 65536, 128
        return {
            "x": _w((lambda *s: torch.randn(*s, dtype=torch.bfloat16) * 0.05)(B, Sq, D)),
            "k_cache": _w((lambda *s: torch.randn(*s, dtype=torch.bfloat16) * 3.2)(B, H, Sk, Dh)),
            "v_cache": _w((lambda *s: torch.randn(*s, dtype=torch.bfloat16) * 1.6)(B, H, Sk, Dh)),
            "wq": _w((lambda *s: torch.randn(*s, dtype=torch.bfloat16) * 3.2)(D, H * Dh) * (D ** -0.5)),
            "wo": _w((lambda *s: torch.randn(*s, dtype=torch.bfloat16) * 1.6)(H * Dh, D) * ((H * Dh) ** -0.5)),
        }
    _A_in = _A_setup()

    def _B_setup():
        B, S, D, F = 1, 1, 512, 1792
        return {
            "x": _w((lambda *s: torch.randn(*s, dtype=torch.bfloat16) * 0.05)(B, S, D)),
            "W_gate": _w((lambda *s: torch.randn(*s, dtype=torch.bfloat16) * 1.6)(D, F) * (2.0 / D) ** 0.5),
            "W_up": _w((lambda *s: torch.randn(*s, dtype=torch.bfloat16) * 1.6)(D, F) * (2.0 / D) ** 0.5),
            "W_down": _w((lambda *s: torch.randn(*s, dtype=torch.bfloat16) * 1.6)(F, D) * (1.0 / F) ** 0.5),
        }
    _B_in = _B_setup()

    return {
        "A_x": _A_in["x"],
        "A_k_cache": _A_in["k_cache"],
        "A_v_cache": _A_in["v_cache"],
        "A_wq": _A_in["wq"],
        "A_wo": _A_in["wo"],
        "B_x": _B_in["x"],
        "B_W_gate": _B_in["W_gate"],
        "B_W_up": _B_in["W_up"],
        "B_W_down": _B_in["W_down"],
    }

def reference(A_x, A_k_cache, A_v_cache, A_wq, A_wo, B_x, B_W_gate, B_W_up, B_W_down):
    def _A_ref(x, k_cache, v_cache, wq, wo):
        B, Sq, D = x.shape
        H, Dh = 32, 128
        q = (lambda x, *d: x.permute(*d))((x @ wq).reshape(B, Sq, H, Dh), 0, 2, 1, 3)
        scores = torch.einsum("bhqd,bhkd->bhqk", q, k_cache) * (Dh ** -0.5)
        p = _softmax(scores, axis=-1)
        o = torch.einsum("bhqk,bhkd->bhqd", p, v_cache)
        return (lambda x, *d: x.permute(*d))(o, 0, 2, 1, 3).reshape(B, Sq, H * Dh) @ wo

    def _B_ref(x, W_gate, W_up, W_down):
        gate = torch.einsum("bsd,df->bsf", x, W_gate)
        up = torch.einsum("bsd,df->bsf", x, W_up)
        gate = gate * (lambda x, dt: x.to(dt))(gate > 0, gate.dtype)
        h = gate * up
        return torch.einsum("bsf,fd->bsd", h, W_down)

    x = A_x
    xn = _layernorm(x, axis=-1)
    return x + _A_ref(xn, A_k_cache, A_v_cache, A_wq, A_wo) + _B_ref(xn, B_W_gate, B_W_up, B_W_down)
```

```python
import sys, struct, json

NAME = "parallel_sum__mha_block_cached__glu_gated_reglu__decode"

def f32bits(x): return struct.unpack("<I", struct.pack("<f", x))[0]
def bf16_round_bits(x):
    u = f32bits(x); r = (u + 0x7FFF + ((u >> 16) & 1)) >> 16
    return r << 16

WS_E    = 0x0
WS_CTR  = 0x1000
WS_Q    = 0x10000
WS_H1   = 0x80000
WS_H2   = 0x100000
WS_SIZE = 0x300000
WS_DBG  = 0x300000
L_XN, L_Q, L_P, L_ML, L_T, L_H, L_B, L_R = 0, 1024, 2048, 4096, 4352, 5376, 5504, 5632
LDS_BYTES = 8192

class G:
    def __init__(s): s.o = []; s.n = 0
    def __call__(s, t):
        for l in t.split("\n"):
            l = l.strip()
            if l: s.o.append(("" if l.endswith(":") else "    ") + l)
    def lab(s, p): s.n += 1; return f"L_{p}{s.n}"

def gen(S=6, F0=8, static=96, lv=(16, 8, 4, 2, 1, 1), A=2, pol="nt", wpol="nt", stamps=False, SPIN=20000):
    W = 4; NW = 32
    assert (static + sum(lv)) * NW == 4096
    a = G()
    DPPF = "row_mask:0xf bank_mask:0xf"
    sWave, sHead, sSplit = "s3", "s4", "s5"
    sOff, sStep, sLeft, sAt = "s34", "s35", "s36", "s37"
    sTag = "s40"
    sSpin = "s41"
    def srd(d, lo, hi, off, size):
        if off is None:
            a(f"s_mov_b32 s{d}, {lo}\ns_mov_b32 s{d+1}, {hi}")
        else:
            a(f"s_add_u32 s{d}, {lo}, {off}\ns_addc_u32 s{d+1}, {hi}, 0")
        a(f"s_mov_b32 s{d+2}, {size}\ns_mov_b32 s{d+3}, 0x20000")
    def xrow(op, x, t):
        a(f"""v_mov_b32 {t}, {x}
        s_nop 1
        v_permlane16_swap_b32 {x}, {t}
        s_nop 1
        {op} {x}, {x}, {t}
        v_mov_b32 {t}, {x}
        s_nop 1
        v_permlane32_swap_b32 {x}, {t}
        s_nop 1
        {op} {x}, {x}, {t}""")
    def ror(op, x, n):
        a(f"s_nop 1\n{op}_dpp {x}, {x}, {x} row_ror:{n} {DPPF}")
    def bf16r(d, s_):
        a(f"v_cvt_pk_bf16_f32 {d}, {s_}, {s_}\nv_and_b32 {d}, 0xffff0000, {d}")
    def stamp(idx):
        if not stamps: return
        a(f"""s_memrealtime s[80:81]
        s_waitcnt lgkmcnt(0)
        v_mov_b32 v254, s80
        v_mov_b32 v255, s81
        s_lshl_b32 s82, s2, 7
        s_add_u32 s82, s82, {WS_DBG + idx*8}
        v_mov_b32 v253, s82
        s_mov_b64 s[84:85], exec
        s_mov_b64 exec, 1
        global_store_dwordx2 v253, v[254:255], s[74:75]
        s_mov_b64 exec, s[84:85]""")

    a(f"""s_cmp_ge_u32 s2, 256
    s_cbranch_scc1 L_end
    s_load_dwordx16 s[52:67], s[0:1], 0
    s_load_dwordx8 s[68:75], s[0:1], 64
    v_lshrrev_b32 v1, 6, v0
    v_and_b32 v0, 63, v0
    s_lshr_b32 {sHead}, s2, 3
    v_readfirstlane_b32 {sWave}, v1
    s_and_b32 {sSplit}, s2, 7""")
    a("""v_and_b32 v20, 15, v0
    v_lshrrev_b32 v21, 4, v0
    v_and_b32 v22, 1, v0
    v_mov_b32 v23, 0xffff
    v_lshlrev_b32 v22, 4, v22
    v_lshlrev_b32 v23, v22, v23
    v_lshrrev_b32 v22, 1, v20""")
    for j in range(4):
        a(f"v_cmp_eq_u32 vcc, {j}, v22\ns_nop 1\nv_cndmask_b32 v{16+j}, 0, v23, vcc")
    a("s_waitcnt lgkmcnt(0)")
    a(f"s_load_dword {sTag}, s[74:75], {WS_E}")
    srd(16, "s74", "s75", None, hex(WS_SIZE))
    a(f"s_cmp_eq_u32 {sWave}, 0\ns_cbranch_scc1 L_helper")

    vKo, vVo, vL, vM, vMC, vC = "v1", "v2", "v3", "v4", "v5", "v6"
    ACC, D, MK, Q, AP, SL = 8, 12, 16, 24, 40, 56
    vS, vT, vP, vU = "v20", "v21", "v22", "v23"
    a(f"s_sub_u32 {sWave}, {sWave}, 1")
    a(f"s_lshl_b32 s38, {sHead}, 24")
    srd(8, "s54", "s55", "s38", "0x1000000")
    srd(12, "s56", "s57", "s38", "0x1000000")
    a(f"""v_lshlrev_b32 {vVo}, 4, v0
    v_and_b32 v7, 3, v0
    v_bfe_u32 v22, v0, 2, 2
    v_lshlrev_b32 {vKo}, 8, v22
    v_lshl_add_u32 {vKo}, v21, 6, {vKo}
    v_lshl_add_u32 {vKo}, v7, 4, {vKo}
    s_mul_i32 {sOff}, {sSplit}, {static*W*4096}
    s_lshl_b32 s38, {sWave}, 12
    s_add_u32 {sOff}, {sOff}, s38
    s_mov_b32 {sStep}, {W*4096}
    s_mov_b32 {sLeft}, {static}
    s_lshl_b32 s38, {sHead}, 8
    s_add_u32 s38, s38, {WS_CTR}
    s_add_u32 s32, s74, s38
    s_addc_u32 s33, s75, 0
    s_barrier""")
    stamp(0)
    vq = []
    def wait_for(tag):
        idx = max(i for i, t in enumerate(vq) if t == tag)
        n = len(vq) - 1 - idx
        assert n <= 63
        a(f"s_waitcnt vmcnt({n})")
    def issueK(slot, tag):
        r = SL + slot * 32
        for i in range(4):
            a(f"buffer_load_dwordx4 v[{r+4*i}:{r+4*i+3}], {vKo}, s[8:11], {sOff} offen offset:{i*1024} {pol}")
            vq.append(("K", tag))
    def issueV(slot, tag):
        r = SL + slot * 32 + 16
        for i in range(4):
            a(f"buffer_load_dwordx4 v[{r+4*i}:{r+4*i+3}], {vVo}, s[12:15], {sOff} offen offset:{i*1024} {pol}")
            vq.append(("V", tag))
    sw = []; rare = []
    def atomic():
        a(f"s_mov_b32 {sAt}, 1\ns_atomic_add {sAt}, s[32:33], 0 glc")
    def pre():
        n = a.lab("x"); sw.append(n)
        a(f"s_cmp_eq_u32 {sLeft}, 0\ns_cbranch_scc1 {n}_sw\n{n}_bk:")
    def post(slot, dyn=True):
        if dyn: a(f"s_mov_b32 s{44+slot}, {sOff}")
        a(f"s_add_u32 {sOff}, {sOff}, {sStep}\ns_sub_u32 {sLeft}, {sLeft}, 1")
        if dyn:
            n = a.lab("na")
            a(f"s_cmp_lg_u32 {sLeft}, {A}\ns_cbranch_scc1 {n}")
            atomic()
            a(f"{n}:")
    issued = 0
    for t in range(S):
        for half in range(2):
            if issued >= F0: a(f"s_waitcnt vmcnt({F0-4})")
            (issueK if half == 0 else issueV)(t, t)
            issued += 4
        post(t, dyn=False)
    a(f"""v_mov_b32 {vL}, 0
    v_mov_b32 {vM}, 0xff800000
    v_mov_b32 {vMC}, 0xff800000
    v_mov_b32 {vC}, 0x3fb8aa3b
    v_mov_b32 v{ACC}, 0
    v_mov_b32 v{ACC+1}, 0
    v_mov_b32 v{ACC+2}, 0
    v_mov_b32 v{ACC+3}, 0
    v_lshl_add_u32 v7, v21, 2, v7
    v_lshlrev_b32 v7, 4, v7
    s_waitcnt lgkmcnt(0)
    s_add_u32 {sTag}, {sTag}, 0x9e3779b9
    s_barrier
    ds_read_b128 v[{D}:{D+3}], v7 offset:{L_Q}""")
    stamp(1)
    a("s_waitcnt lgkmcnt(0)")
    for b in range(4):
        a(f"v_cmp_eq_u32 vcc, {b}, v22\ns_nop 1")
        for j in range(4):
            a(f"v_cndmask_b32 v{Q+4*b+j}, 0, v{D+j}, vcc")
    a("s_nop 1")
    def consume(slot, tag, reissue, nK=None, nV=None):
        kb = SL + slot * 32; vb = kb + 16
        if nK is None: wait_for(("K", tag))
        else: a(f"s_waitcnt vmcnt({nK})")
        for b in range(4):
            c = "0" if b == 0 else f"v[{D}:{D+3}]"
            a(f"v_mfma_f32_16x16x32_bf16 v[{D}:{D+3}], v[{kb+4*b}:{kb+4*b+3}], v[{Q+4*b}:{Q+4*b+3}], {c}")
        if reissue is not None:
            pre(); issueK(slot, reissue); a("s_nop 1")
        else:
            a("s_nop 7")
        n = a.lab("r"); rare.append(n)
        a(f"""v_mov_b32_dpp {vS}, v{D} quad_perm:[0,0,0,0] {DPPF}
        v_mov_b32_dpp {vT}, v{D+2} quad_perm:[2,2,2,2] {DPPF}
        s_nop 0
        v_add_f32_dpp {vS}, v{D+1}, {vS} quad_perm:[1,1,1,1] {DPPF}
        v_add_f32_dpp {vT}, v{D+3}, {vT} quad_perm:[3,3,3,3] {DPPF}
        v_add_f32 {vS}, {vS}, {vT}
        v_cvt_pk_bf16_f32 {vS}, {vS}, {vS}
        v_and_b32 {vS}, 0xffff0000, {vS}
        v_mul_f32 {vS}, 0x3db504f3, {vS}
        v_cvt_pk_bf16_f32 {vS}, {vS}, {vS}
        v_and_b32 {vS}, 0xffff0000, {vS}
        v_cmp_gt_f32 vcc, {vS}, {vM}
        s_cbranch_vccnz {n}_rare
        {n}_bk:
        v_fma_f32 {vT}, {vS}, {vC}, -{vMC}
        v_exp_f32 {vP}, {vT}
        s_nop 0
        v_cvt_pk_bf16_f32 {vU}, {vP}, {vP}
        v_add_f32 {vL}, {vL}, {vP}
        s_nop 0""")
        for b in range(4):
            for j in range(4):
                a(f"v_and_b32_dpp v{AP+4*b+j}, {vU}, v{MK+j} row_newbcast:{4*b} {DPPF}")
        if nV is None: wait_for(("V", tag))
        else: a(f"s_waitcnt vmcnt({nV})")
        for b in range(4):
            a(f"v_mfma_f32_16x16x32_bf16 v[{ACC}:{ACC+3}], v[{AP+4*b}:{AP+4*b+3}], v[{vb+4*b}:{vb+4*b+3}], v[{ACC}:{ACC+3}]")
        if reissue is not None:
            issueV(slot, reissue); post(slot)
    WO = SL + 2 * 32
    consume(0, 0, "A")
    consume(1, 1, "B")
    for t in range(2, S):
        consume(t, t, None)
        if t == 2:
            a(f"""s_lshl_b32 s38, s2, 14
            s_lshl_b32 s39, {sWave}, 8
            s_add_u32 s38, s38, s39""")
            srd(20, "s60", "s61", None, "0x400000")
            a("v_lshlrev_b32 v7, 2, v0")
            for d in range(16):
                if d and d % 4 == 0: a("s_add_u32 s38, s38, 4096")
                a(f"buffer_load_dword v{WO+d}, v7, s[20:23], s38 offen offset:{(d%4)*1024} {wpol}")
                vq.append(("W", 0))
    consume(0, "A", "C")
    consume(1, "B", "D")
    a("L_loop:")
    for slot in range(2):
        a(f"s_cmp_ge_u32 s{44+slot}, 0x1000000\ns_cbranch_scc1 L_done")
        consume(slot, None, "x", nK=12, nV=12)
    a("s_branch L_loop")
    for n in sw:
        a(f"""{n}_sw:
        s_waitcnt lgkmcnt(0)
        s_lshr_b32 s38, {sAt}, 5
        s_and_b32 s39, {sAt}, 31
        s_mov_b32 {sOff}, 0x1000000
        s_mov_b32 {sLeft}, 0x100000
        s_mov_b32 {sStep}, 0
        s_cmp_ge_u32 s38, {len(lv)}
        s_cbranch_scc1 {n}_bk""")
        b = static * NW
        a(f"s_mov_b32 {sLeft}, {lv[0]}\ns_mov_b32 {sOff}, {b}")
        for k in range(1, len(lv)):
            b += lv[k-1] * NW
            a(f"s_cmp_ge_u32 s38, {k}\ns_cselect_b32 {sLeft}, {lv[k]}, {sLeft}\ns_cselect_b32 {sOff}, {b}, {sOff}")
        a(f"""s_mul_i32 s39, s39, {sLeft}
        s_add_u32 {sOff}, {sOff}, s39
        s_lshl_b32 {sOff}, {sOff}, 12
        s_mov_b32 {sStep}, 4096
        s_cmp_gt_u32 {sLeft}, {A}
        s_cbranch_scc1 {n}_bk""")
        atomic()
        a(f"s_branch {n}_bk")
    for n in rare:
        a(f"{n}_rare:\nv_mov_b32 {vT}, {vS}")
        ror("v_max_f32", vT, 4); ror("v_max_f32", vT, 8)
        xrow("v_max_f32", vT, vU)
        a(f"""v_max_f32 {vM}, {vM}, {vT}
        v_mul_f32 {vT}, {vM}, {vC}
        v_sub_f32 {vU}, {vMC}, {vT}
        v_exp_f32 {vU}, {vU}
        v_mov_b32 {vMC}, {vT}
        v_mul_f32 {vL}, {vL}, {vU}
        v_mul_f32 v{ACC}, v{ACC}, {vU}
        v_mul_f32 v{ACC+1}, v{ACC+1}, {vU}
        v_mul_f32 v{ACC+2}, v{ACC+2}, {vU}
        v_mul_f32 v{ACC+3}, v{ACC+3}, {vU}
        s_branch {n}_bk""")
    a("L_done:")
    stamp(2)
    ror("v_add_f32", vL, 4); ror("v_add_f32", vL, 8)
    xrow("v_add_f32", vL, vT)
    a(f"""v_and_b32 v20, 15, v0
    v_lshrrev_b32 v21, 4, v0
    v_lshlrev_b32 v22, 5, v20
    v_lshl_add_u32 v22, v21, 4, v22
    s_lshl_b32 s38, {sWave}, 9
    v_add_u32 v22, s38, v22
    s_lshl_b32 s38, {sWave}, 3
    v_mov_b32 v23, s38
    v_mov_b32 v6, {vMC}
    v_mov_b32 v7, {vL}
    s_mov_b32 exec_hi, 0
    ds_write_b128 v22, v[{ACC}:{ACC+3}] offset:{L_P}
    s_mov_b64 exec, 1
    ds_write_b64 v23, v[6:7] offset:{L_ML}
    s_mov_b64 exec, -1
    v_mov_b32 v1, {sTag}""")
    vTag = "v1"
    WU = SL + 3 * 32
    a("s_waitcnt vmcnt(0)")
    for d in range(16):
        a(f"v_lshlrev_b32 v{WU+2*d}, 16, v{WO+d}\nv_and_b32 v{WU+2*d+1}, 0xffff0000, v{WO+d}")
    a(f"""s_waitcnt lgkmcnt(0)
    s_barrier
    s_cmp_lg_u32 {sWave}, 0
    s_cbranch_scc1 L_h1poll
    v_lshlrev_b32 v2, 3, v0
    v_mov_b32 v3, 0
    ds_read_b128 v[24:27], v3 offset:{L_ML}
    ds_read_b128 v[28:31], v3 offset:{L_ML+16}
    ds_read_b64 v[32:33], v2 offset:{L_P}
    ds_read_b64 v[34:35], v2 offset:{L_P+512}
    ds_read_b64 v[36:37], v2 offset:{L_P+1024}
    ds_read_b64 v[38:39], v2 offset:{L_P+1536}
    s_waitcnt lgkmcnt(4)
    v_max_f32 v8, v24, v26
    v_max3_f32 v8, v28, v30, v8
    v_sub_f32 v24, v24, v8
    v_sub_f32 v26, v26, v8
    v_sub_f32 v28, v28, v8
    v_sub_f32 v30, v30, v8
    v_exp_f32 v24, v24
    v_exp_f32 v26, v26
    v_exp_f32 v28, v28
    v_exp_f32 v30, v30
    v_mov_b32 v9, {vTag}
    v_mul_f32 v10, v24, v25
    v_fmac_f32 v10, v26, v27
    v_fmac_f32 v10, v28, v29
    v_fmac_f32 v10, v30, v31
    v_mov_b32 v11, {vTag}
    s_waitcnt lgkmcnt(0)
    v_mul_f32 v12, v24, v32
    v_mul_f32 v14, v24, v33
    v_fmac_f32 v12, v26, v34
    v_fmac_f32 v14, v26, v35
    v_fmac_f32 v12, v28, v36
    v_fmac_f32 v14, v28, v37
    v_fmac_f32 v12, v30, v38
    v_fmac_f32 v14, v30, v39
    v_mov_b32 v13, {vTag}
    v_mov_b32 v15, {vTag}
    v_lshlrev_b32 v2, 4, v0
    s_lshl_b32 s38, s2, 11
    s_add_u32 s38, s38, {WS_H1}
    buffer_store_dwordx4 v[12:15], v2, s[16:19], s38 offen sc1
    s_mov_b64 exec, 1
    buffer_store_dwordx4 v[8:11], v2, s[16:19], s38 offen offset:1024 sc1
    s_mov_b64 exec, -1
    L_h1poll:
    v_lshrrev_b32 v2, 3, v0
    v_lshlrev_b32 v3, 11, v2
    v_and_b32 v4, 7, v0
    v_lshl_add_u32 v2, v4, 4, v3
    s_lshl_b32 s38, {sHead}, 14
    s_add_u32 s38, s38, {WS_H1}
    s_lshl_b32 s39, {sSplit}, 7
    s_add_u32 s39, s39, s38
    s_mov_b32 {sSpin}, {SPIN}
    L_h1loop:
    buffer_load_dwordx4 v[8:11], v2, s[16:19], s39 offen sc1
    buffer_load_dwordx4 v[12:15], v3, s[16:19], s38 offen offset:1024 sc1
    s_sub_u32 {sSpin}, {sSpin}, 1
    s_waitcnt vmcnt(0)
    v_xor_b32 v20, {vTag}, v9
    v_xor_b32 v21, {vTag}, v11
    v_xor_b32 v22, {vTag}, v13
    v_xor_b32 v23, {vTag}, v15
    v_or3_b32 v20, v20, v21, v22
    v_or_b32 v20, v20, v23
    v_cmp_ne_u32 vcc, 0, v20
    s_cbranch_vccz L_h1ok
    s_cmp_lg_u32 {sSpin}, 0
    s_cbranch_scc1 L_h1loop
    L_h1ok:""")
    stamp(3)
    a("v_mov_b32 v20, v12")
    ror("v_max_f32", "v20", 8); xrow("v_max_f32", "v20", "v21")
    a("""v_sub_f32 v12, v12, v20
    v_exp_f32 v12, v12
    s_nop 0
    v_mul_f32 v8, v8, v12
    v_mul_f32 v10, v10, v12
    v_mul_f32 v14, v14, v12""")
    for x in ("v8", "v10", "v14"):
        ror("v_add_f32", x, 8); xrow("v_add_f32", x, "v21")
    a("""v_rcp_f32 v14, v14
    s_nop 0
    v_mul_f32 v8, v8, v14
    v_mul_f32 v10, v10, v14""")
    bf16r("v8", "v8"); bf16r("v10", "v10")
    a("s_nop 0")
    for j in range(8):
        a(f"v_readlane_b32 s{76+2*j}, v8, {j}\nv_readlane_b32 s{77+2*j}, v10, {j}")
    a(f"""s_nop 1
    v_mul_f32 v12, s76, v{WU}
    v_mul_f32 v14, s76, v{WU+1}""")
    for d in range(1, 16):
        a(f"v_fmac_f32 v12, s{76+d}, v{WU+2*d}\nv_fmac_f32 v14, s{76+d}, v{WU+2*d+1}")
    a(f"""v_mov_b32 v13, {vTag}
    v_mov_b32 v15, {vTag}
    v_lshrrev_b32 v2, 3, v0
    v_lshlrev_b32 v2, 16, v2
    v_lshl_add_u32 v2, v4, 4, v2
    s_lshl_b32 s38, {sWave}, 19
    s_lshl_b32 s39, s2, 7
    s_add_u32 s38, s38, s39
    s_add_u32 s38, s38, {WS_H2}
    buffer_store_dwordx4 v[12:15], v2, s[16:19], s38 offen sc1
    s_and_b32 s38, {sHead}, 7
    s_cmp_lg_u32 s38, {sSplit}
    s_cbranch_scc1 L_end""")
    srd(28, "s52", "s53", None, 1024)
    a(f"""v_lshlrev_b32 v5, 1, v0
    s_lshl_b32 s42, {sHead}, 5
    buffer_load_ushort v6, v5, s[28:31], s42 offen
    v_lshlrev_b32 v2, 4, v0
    s_lshl_b32 s38, {sHead}, 16
    s_lshl_b32 s39, {sWave}, 13
    s_add_u32 s38, s38, s39
    s_add_u32 s38, s38, {WS_H2}
    s_add_u32 s39, s38, 4096
    s_mov_b32 {sSpin}, {SPIN}
    L_h2loop:""")
    for i in range(8):
        a(f"buffer_load_dwordx4 v[{24+4*i}:{27+4*i}], v2, s[16:19], {'s38' if i < 4 else 's39'} offen offset:{(i%4)*1024} sc1")
    a(f"s_sub_u32 {sSpin}, {sSpin}, 1\nv_mov_b32 v20, 0")
    for i in range(8):
        a(f"""s_waitcnt vmcnt({7-i})
        v_xor_b32 v21, {vTag}, v{25+4*i}
        v_xor_b32 v22, {vTag}, v{27+4*i}
        v_or3_b32 v20, v21, v22, v20""")
    a(f"""v_cmp_ne_u32 vcc, 0, v20
    s_cbranch_vccz L_h2ok
    s_cmp_lg_u32 {sSpin}, 0
    s_cbranch_scc1 L_h2loop
    L_h2ok:""")
    stamp(4)
    a("v_add_f32 v8, v24, v28\nv_add_f32 v9, v26, v30")
    for i in range(2, 8):
        a(f"v_add_f32 v8, v8, v{24+4*i}\nv_add_f32 v9, v9, v{26+4*i}")
    for x in ("v8", "v9"):
        ror("v_add_f32", x, 8); xrow("v_add_f32", x, "v21")
    a(f"""s_lshl_b32 s38, {sWave}, 6
    v_lshl_add_u32 v2, v0, 3, s38
    s_mov_b64 exec, 0xff
    ds_write_b64 v2, v[8:9] offset:{L_R}
    s_mov_b64 exec, -1
    s_waitcnt lgkmcnt(0)
    s_barrier
    s_cmp_lg_u32 {sWave}, 0
    s_cbranch_scc1 L_end
    v_and_b32 v2, 15, v0
    v_lshlrev_b32 v2, 2, v2
    ds_read_b32 v8, v2 offset:{L_R}
    ds_read_b32 v9, v2 offset:{L_R+64}
    ds_read_b32 v10, v2 offset:{L_R+128}
    ds_read_b32 v11, v2 offset:{L_R+192}
    ds_read_b32 v12, v2 offset:{L_B}""")
    srd(24, "s70", "s71", None, 1024)
    a(f"""v_lshlrev_b32 v6, 16, v6
    s_waitcnt lgkmcnt(0)
    v_add_f32 v8, v8, v9
    v_add_f32 v10, v10, v11
    v_add_f32 v8, v8, v10""")
    bf16r("v8", "v8")
    a("v_add_f32 v8, v6, v8")
    bf16r("v8", "v8")
    a(f"""v_add_f32 v8, v8, v12
    v_cvt_pk_bf16_f32 v8, v8, v8
    s_mov_b64 exec, 0xffff
    buffer_store_short v8, v5, s[24:27], s42 offen
    s_cmp_lg_u32 {sHead}, 0
    s_cbranch_scc1 L_fin
    s_mov_b64 exec, 1
    v_mov_b32 v2, {WS_E}
    buffer_store_dword {vTag}, v2, s[16:19], 0 offen sc1
    L_fin:""")
    stamp(5)
    a("s_endpgm")

    a("L_helper:")
    XB, WQ, HA, HD = 24, 64, 32, 40
    sSelLo, sSelHi = "s42", "s43"
    a(f"""s_cmp_lg_u32 {sSplit}, 0
    s_cbranch_scc1 L_noinit
    s_lshl_b32 s38, {sHead}, 8
    s_add_u32 s38, s38, {WS_CTR}
    v_mov_b32 v2, 0
    s_mov_b64 exec, 1
    buffer_store_dword v2, v2, s[16:19], s38 offen sc1
    s_mov_b64 exec, -1
    L_noinit:""")
    srd(28, "s52", "s53", None, 1024)
    a(f"""v_lshlrev_b32 v2, 4, v0
    buffer_load_dwordx4 v[8:11], v2, s[28:31], 0 offen
    s_lshl_b32 s38, {sSplit}, 19
    s_lshl_b32 s39, {sHead}, 8
    s_add_u32 s38, s38, s39""")
    srd(20, "s58", "s59", None, "0x400000")
    a(f"""v_lshlrev_b32 v3, 17, v21
    v_lshl_add_u32 v3, v20, 4, v3""")
    for t in range(16):
        a(f"buffer_load_dwordx4 v[{WQ+4*t}:{WQ+4*t+3}], v3, s[20:23], s38 offen {wpol}")
        if t < 15: a("s_add_u32 s38, s38, 8192")
    a(f"""s_barrier
    s_mov_b32 {sSelLo}, 0x01000100
    s_mov_b32 {sSelHi}, 0x03020302
    s_waitcnt vmcnt(16)""")
    for i in range(4):
        a(f"v_lshlrev_b32 v{48+2*i}, 16, v{8+i}\nv_and_b32 v{49+2*i}, 0xffff0000, v{8+i}")
    a("v_add_f32 v4, v48, v49")
    for i in range(2, 8): a(f"v_add_f32 v4, v4, v{48+i}")
    def allsum(x, t):
        for n in (8, 4, 2, 1): ror("v_add_f32", x, n)
        xrow("v_add_f32", x, t)
    allsum("v4", "v5")
    a(f"v_mul_f32 v4, {hex(f32bits(1/512))}, v4")
    a("v_sub_f32 v6, v48, v4\nv_mul_f32 v5, v6, v6")
    for i in range(1, 8): a(f"v_sub_f32 v6, v{48+i}, v4\nv_fmac_f32 v5, v6, v6")
    allsum("v5", "v6")
    a(f"v_mul_f32 v5, {hex(f32bits(1/512))}, v5")
    bf16r("v4", "v4"); bf16r("v5", "v5")
    a(f"v_add_f32 v5, {hex(bf16_round_bits(1e-5))}, v5")
    bf16r("v5", "v5")
    a("v_sqrt_f32 v5, v5\ns_nop 0")
    bf16r("v5", "v5")
    a("v_rcp_f32 v5, v5")
    for i in range(8):
        a(f"v_sub_f32 v{48+i}, v{48+i}, v4")
        bf16r(f"v{48+i}", f"v{48+i}")
        a(f"v_mul_f32 v{48+i}, v{48+i}, v5")
    for i in range(4):
        a(f"v_cvt_pk_bf16_f32 v{8+i}, v{48+2*i}, v{49+2*i}")
    a(f"""ds_write_b128 v2, v[8:11] offset:{L_XN}
    s_lshl_b32 s38, {sSplit}, 7
    v_lshl_add_u32 v4, v21, 5, s38
    s_waitcnt lgkmcnt(0)
    s_add_u32 {sTag}, {sTag}, 0x9e3779b9
    ds_read_b128 v[{XB}:{XB+3}], v4 offset:{L_XN}
    ds_read_b128 v[{XB+4}:{XB+7}], v4 offset:{L_XN+16}
    v_mov_b32 v1, {sTag}
    s_waitcnt lgkmcnt(0)""")
    def buildA(xreg, hi, aset, mk):
        a(f"v_perm_b32 v7, v{xreg}, v{xreg}, {sSelHi if hi else sSelLo}")
        for j in range(4): a(f"v_and_b32 v{HA+4*aset+j}, v7, v{mk+j}")
    buildA(XB, 0, 0, 16)
    for t in range(16):
        if t < 15: buildA(XB + (t+1)//2, (t+1) % 2, (t+1) % 2, 16)
        else: a("s_nop 1")
        a(f"s_waitcnt vmcnt({15-t})")
        c = "0" if t == 0 else f"v[{HD}:{HD+3}]"
        a(f"v_mfma_f32_16x16x32_bf16 v[{HD}:{HD+3}], v[{HA+4*(t%2)}:{HA+4*(t%2)+3}], v[{WQ+4*t}:{WQ+4*t+3}], {c}")
    def publish4(acc, voff, soff):
        a(f"""v_mov_b32 v8, v{acc}
        v_mov_b32 v10, v{acc+1}
        v_mov_b32 v12, v{acc+2}
        v_mov_b32 v14, v{acc+3}
        s_mov_b32 exec_hi, 0
        buffer_store_dwordx4 v[8:11], {voff}, s[16:19], {soff} offen sc1
        buffer_store_dwordx4 v[12:15], {voff}, s[16:19], {soff} offen offset:16 sc1
        s_mov_b64 exec, -1
        s_nop 1""")
    a(f"""v_lshlrev_b32 v4, 6, v20
    v_lshl_add_u32 v4, v21, 5, v4
    v_mov_b32 v9, v1
    v_mov_b32 v11, v1
    v_mov_b32 v13, v1
    v_mov_b32 v15, v1
    s_lshl_b32 s38, s2, 10
    s_add_u32 s38, s38, {WS_Q}
    s_nop 1""")
    publish4(HD, "v4", "s38")
    stamp(6)
    a(f"""s_lshl_b32 s38, {sHead}, 13
    s_add_u32 s38, s38, {WS_Q}
    s_add_u32 s39, s38, 4096
    s_mov_b32 {sSpin}, {SPIN}
    L_qloop:""")
    for i in range(8):
        a(f"buffer_load_dwordx4 v[{WQ+4*i}:{WQ+3+4*i}], v2, s[16:19], {'s38' if i < 4 else 's39'} offen offset:{(i%4)*1024} sc1")
    a(f"s_sub_u32 {sSpin}, {sSpin}, 1\nv_mov_b32 v4, 0")
    for i in range(8):
        a(f"""s_waitcnt vmcnt({7-i})
        v_xor_b32 v5, v1, v{WQ+1+4*i}
        v_xor_b32 v6, v1, v{WQ+3+4*i}
        v_or3_b32 v4, v5, v6, v4""")
    a(f"""v_cmp_ne_u32 vcc, 0, v4
    s_cbranch_vccz L_qok
    s_cmp_lg_u32 {sSpin}, 0
    s_cbranch_scc1 L_qloop
    L_qok:
    v_add_f32 v4, v{WQ}, v{WQ+4}
    v_add_f32 v5, v{WQ+2}, v{WQ+6}""")
    for i in range(2, 8):
        a(f"v_add_f32 v4, v4, v{WQ+4*i}\nv_add_f32 v5, v5, v{WQ+2+4*i}")
    a(f"""v_cvt_pk_bf16_f32 v4, v4, v5
    v_lshlrev_b32 v5, 2, v0
    ds_write_b32 v5, v4 offset:{L_Q}
    s_waitcnt lgkmcnt(0)
    s_barrier""")
    a(f"""s_add_u32 s38, {sHead}, 3
    s_and_b32 s38, s38, 7
    s_cmp_lg_u32 s38, {sSplit}
    s_cbranch_scc1 L_noffn
    s_cmp_ge_u32 {sHead}, 28
    s_cbranch_scc1 L_noffn""")
    srd(20, "s64", "s65", None, 512*3584)
    srd(24, "s66", "s67", None, 512*3584)
    MK2 = 48
    a(f"""v_bfe_u32 v22, v0, 1, 2""")
    for j in range(4):
        a(f"v_cmp_eq_u32 vcc, {j}, v22\ns_nop 1\nv_cndmask_b32 v{MK2+j}, 0, v23, vcc")
    a(f"""v_lshrrev_b32 v3, 3, v0
    s_mov_b32 s38, {64*3584}
    v_mul_lo_u32 v4, v3, s38
    v_and_b32 v5, 7, v0
    v_lshl_add_u32 v4, v5, 4, v4
    v_lshlrev_b32 v3, 7, v3
    s_lshl_b32 s38, {sHead}, 7
    s_mov_b32 s39, 8""")
    for j in range(8): a(f"v_mov_b32 v{HD+j}, 0")
    a(f"""L_ffn1:
    ds_read_b128 v[{XB}:{XB+3}], v3 offset:{L_XN}""")
    for t in range(8):
        a(f"buffer_load_dwordx4 v[{WQ+8*t}:{WQ+8*t+3}], v4, s[20:23], s38 offen {wpol}")
        a(f"buffer_load_dwordx4 v[{WQ+8*t+4}:{WQ+8*t+7}], v4, s[24:27], s38 offen {wpol}")
        a("s_add_u32 s38, s38, 3584")
    a("v_add_u32 v3, 16, v3\ns_waitcnt lgkmcnt(0)")
    buildA(XB, 0, 0, MK2)
    for t in range(8):
        if t < 7: buildA(XB + (t+1)//2, (t+1) % 2, (t+1) % 2, MK2)
        else: a("s_nop 1")
        a(f"s_waitcnt vmcnt({14-2*t})")
        a(f"v_mfma_f32_16x16x32_bf16 v[{HD}:{HD+3}], v[{HA+4*(t%2)}:{HA+4*(t%2)+3}], v[{WQ+8*t}:{WQ+8*t+3}], v[{HD}:{HD+3}]")
        a(f"v_mfma_f32_16x16x32_bf16 v[{HD+4}:{HD+7}], v[{HA+4*(t%2)}:{HA+4*(t%2)+3}], v[{WQ+8*t+4}:{WQ+8*t+7}], v[{HD+4}:{HD+7}]")
    a(f"""s_sub_u32 s39, s39, 1
    s_cmp_lg_u32 s39, 0
    s_cbranch_scc1 L_ffn1""")
    a(f"""v_lshrrev_b32 v3, 5, v0
    v_bfe_u32 v4, v0, 3, 1
    v_cmp_eq_u32 vcc, v3, v4
    v_lshlrev_b32 v3, 8, v3
    v_lshl_add_u32 v3, v5, 5, v3
    v_bfe_u32 v4, v0, 4, 1
    v_lshl_add_u32 v3, v4, 4, v3
    s_nop 4
    s_mov_b64 exec, vcc
    ds_write_b128 v3, v[{HD}:{HD+3}] offset:{L_T}
    ds_write_b128 v3, v[{HD+4}:{HD+7}] offset:{L_T+512}
    s_mov_b64 exec, -1
    v_lshlrev_b32 v3, 2, v0
    s_waitcnt lgkmcnt(0)
    ds_read_b32 v4, v3 offset:{L_T}
    ds_read_b32 v5, v3 offset:{L_T+256}
    ds_read_b32 v6, v3 offset:{L_T+512}
    ds_read_b32 v7, v3 offset:{L_T+768}
    s_waitcnt lgkmcnt(0)
    v_add_f32 v4, v4, v5
    v_add_f32 v6, v6, v7""")
    bf16r("v4", "v4"); bf16r("v6", "v6")
    a(f"""v_cmp_lt_f32 vcc, 0, v4
    s_nop 1
    v_cndmask_b32 v5, 0, 1.0, vcc
    v_mul_f32 v4, v4, v5
    v_mul_f32 v4, v4, v6
    v_cvt_pk_bf16_f32 v4, v4, v4
    v_lshlrev_b32 v3, 1, v0
    ds_write_b16 v3, v4 offset:{L_H}
    v_lshlrev_b32 v3, 5, v21
    s_waitcnt lgkmcnt(0)
    ds_read_b128 v[{XB}:{XB+3}], v3 offset:{L_H}
    ds_read_b128 v[{XB+4}:{XB+7}], v3 offset:{L_H+16}
    s_lshl_b32 s38, {sHead}, 16""")
    srd(20, "s68", "s69", None, 1792*1024)
    a(f"""v_lshlrev_b32 v4, 14, v21
    v_lshl_add_u32 v4, v20, 4, v4
    s_waitcnt lgkmcnt(0)""")
    YA = 128
    for tb in range(4):
        for tt in range(4):
            for cb in range(4):
                r = WQ + 16*tt + 4*cb
                a(f"buffer_load_dwordx4 v[{r}:{r+3}], v4, s[20:23], s38 offen offset:{tt*1024+cb*256} {wpol}")
        a("s_add_u32 s38, s38, 4096")
        for tt in range(4):
            t = tb*4 + tt
            buildA(XB + t//2, t % 2, t % 2, 16)
            a(f"s_waitcnt vmcnt({12-4*tt})\ns_nop 0")
            for cb in range(4):
                r = WQ + 16*tt + 4*cb
                c = "0" if t == 0 else f"v[{YA+4*cb}:{YA+4*cb+3}]"
                a(f"v_mfma_f32_16x16x32_bf16 v[{YA+4*cb}:{YA+4*cb+3}], v[{HA+4*(t%2)}:{HA+4*(t%2)+3}], v[{r}:{r+3}], {c}")
    a(f"""v_lshrrev_b32 v4, 1, v20
    v_lshlrev_b32 v4, 16, v4
    v_and_b32 v5, 1, v20
    v_lshl_add_u32 v4, v5, 6, v4
    v_lshl_add_u32 v4, v21, 5, v4
    s_lshl_b32 s38, {sHead}, 7
    s_add_u32 s38, s38, {WS_H2 + 256*128}
    s_nop 2""")
    for cb in range(4):
        publish4(YA + 4*cb, "v4", "s38")
        if cb < 3: a(f"s_add_u32 s38, s38, {8*65536}")
    a("L_noffn:")
    a(f"""s_and_b32 s38, {sHead}, 7
    s_cmp_lg_u32 s38, {sSplit}
    s_cbranch_scc1 L_end
    s_lshl_b32 s38, {sHead}, 16
    s_add_u32 s38, s38, {WS_H2 + 256*128}
    s_mov_b32 {sSpin}, {SPIN}
    v_mov_b32 v{WQ+12}, 0
    v_mov_b32 v{WQ+13}, v1
    v_mov_b32 v{WQ+14}, 0
    v_mov_b32 v{WQ+15}, v1
    L_bloop:
    s_sleep 16""")
    for i in range(3):
        a(f"buffer_load_dwordx4 v[{WQ+4*i}:{WQ+3+4*i}], v2, s[16:19], s38 offen offset:{i*1024} sc1")
    a(f"""s_mov_b32 exec_hi, 0
    buffer_load_dwordx4 v[{WQ+12}:{WQ+15}], v2, s[16:19], s38 offen offset:3072 sc1
    s_mov_b64 exec, -1
    s_sub_u32 {sSpin}, {sSpin}, 1
    v_mov_b32 v4, 0
    s_waitcnt vmcnt(0)""")
    for i in range(4):
        a(f"""v_xor_b32 v5, v1, v{WQ+1+4*i}
        v_xor_b32 v6, v1, v{WQ+3+4*i}
        v_or3_b32 v4, v5, v6, v4""")
    a(f"""v_cmp_ne_u32 vcc, 0, v4
    s_cbranch_vccz L_bok
    s_cmp_lg_u32 {sSpin}, 0
    s_cbranch_scc1 L_bloop
    L_bok:
    v_add_f32 v8, v{WQ}, v{WQ+4}
    v_add_f32 v9, v{WQ+2}, v{WQ+6}
    v_add_f32 v8, v8, v{WQ+8}
    v_add_f32 v9, v9, v{WQ+10}
    v_add_f32 v8, v8, v{WQ+12}
    v_add_f32 v9, v9, v{WQ+14}""")
    for x in ("v8", "v9"):
        ror("v_add_f32", x, 8); xrow("v_add_f32", x, "v5")
    bf16r("v8", "v8"); bf16r("v9", "v9")
    a(f"""v_lshlrev_b32 v3, 3, v0
    s_mov_b64 exec, 0xff
    ds_write_b64 v3, v[8:9] offset:{L_B}
    s_waitcnt lgkmcnt(0)""")
    stamp(7)
    a("L_end:\ns_endpgm")

    body = "\n".join(a.o)
    hdr = open("cdna_kernels/" + NAME + ".s.ref").read().split("; @launch")[0]
    out = hdr + f"; @launch grid=(256,1,1) block=(320,1,1) lds={LDS_BYTES}\n"
    out += f""".amdgcn_target "amdgcn-amd-amdhsa--gfx950"
.text
.globl {NAME}_kernel
.p2align 8
.type {NAME}_kernel,@function
{NAME}_kernel:
{body}
.section .rodata,"a"
.p2align 6
.amdhsa_kernel {NAME}_kernel
  .amdhsa_next_free_vgpr 256
  .amdhsa_next_free_sgpr 96
  .amdhsa_accum_offset 256
  .amdhsa_group_segment_fixed_size 0
  .amdhsa_kernarg_size 96
  .amdhsa_user_sgpr_count 2
  .amdhsa_user_sgpr_kernarg_segment_ptr 1
  .amdhsa_system_sgpr_workgroup_id_x 1
.end_amdhsa_kernel
"""
    return out

if __name__ == "__main__":
    kw = json.loads(sys.argv[2]) if len(sys.argv) > 2 else {}
    open(sys.argv[1], "w").write(gen(**kw))
```

```python
import sys, struct, json

NAME = "parallel_sum__mha_block_cached__glu_gated_reglu__decode"

def f32bits(x): return struct.unpack("<I", struct.pack("<f", x))[0]
def bf16_round_bits(x):
    u = f32bits(x); r = (u + 0x7FFF + ((u >> 16) & 1)) >> 16
    return r << 16

WS_E    = 0x0
WS_CTR  = 0x1000
WS_Q    = 0x10000
WS_H1   = 0x80000
WS_H2   = 0x100000
WS_SIZE = 0x300000
WS_DBG  = 0x300000
L_XN, L_Q, L_P, L_ML, L_T, L_H, L_B, L_R, L_O = 0, 1024, 2048, 4096, 4352, 5376, 5504, 5632, 5888

class G:
    def __init__(s): s.o = []; s.n = 0
    def __call__(s, t):
        for l in t.split("\n"):
            l = l.strip()
            if l: s.o.append(("" if l.endswith(":") else "    ") + l)
    def lab(s, p): s.n += 1; return f"L_{p}{s.n}"

def gen(S=6, F0=8, ST=12,
        sched=((8, 28, 0), (4, 12, 0), (2, 8, 0), (1, 8, 0), (2, 8, 50), (4, 12, 50), (2, 16, 50), (1, 16, 50)), NM=16,
        A=1, CAP=128, pol="nt", wpol="nt", stamps=False, SPIN=20000, dstamp=False, noffn=False, noqwait=False,
        h1sleep=0, h2sleep=0, qsleep=0, hmap='div', sync=2):
    W = 4
    NS = ST * 8 + sum(x * n for x, n, _ in sched)
    assert 2 * NS + NM == 1024, (NS, NM)
    assert ST >= S + 4
    NK = sum(n for _, n, _ in sched); NALL = NK + NM
    assert NALL + 3 <= 256
    L_CL, L_VA = 6144, 7168
    L_SC = 8192
    LDS_BYTES = L_SC + 4 * CAP * 64
    a = G()
    DPPF = "row_mask:0xf bank_mask:0xf"
    sWave, sHead, sSplit = "s3", "s4", "s5"
    sOff, sStep, sLeft, sAt = "s34", "s35", "s36", "s37"
    sTag = "s40"
    sSpin = "s41"
    def srd(d, lo, hi, off, size):
        if off is None:
            a(f"s_mov_b32 s{d}, {lo}\ns_mov_b32 s{d+1}, {hi}")
        else:
            a(f"s_add_u32 s{d}, {lo}, {off}\ns_addc_u32 s{d+1}, {hi}, 0")
        a(f"s_mov_b32 s{d+2}, {size}\ns_mov_b32 s{d+3}, 0x20000")
    def xrow(op, x, t):
        a(f"""v_mov_b32 {t}, {x}
        s_nop 1
        v_permlane16_swap_b32 {x}, {t}
        s_nop 1
        {op} {x}, {x}, {t}
        v_mov_b32 {t}, {x}
        s_nop 1
        v_permlane32_swap_b32 {x}, {t}
        s_nop 1
        {op} {x}, {x}, {t}""")
    def ror(op, x, n):
        a(f"s_nop 1\n{op}_dpp {x}, {x}, {x} row_ror:{n} {DPPF}")
    def red3(xs, ts, op="v_add_f32"):
        pad = max(0, 2 - (len(xs) - 1))
        nop = (lambda: a(f"s_nop {pad-1}")) if pad else (lambda: None)
        a("s_nop 1")
        for x in xs: a(f"{op}_dpp {x}, {x}, {x} row_ror:8 {DPPF}")
        for sw_ in ("v_permlane16_swap_b32", "v_permlane32_swap_b32"):
            for x, t in zip(xs, ts): a(f"v_mov_b32 {t}, {x}")
            a("s_nop 1")
            for x, t in zip(xs, ts): a(f"{sw_} {x}, {t}")
            nop()
            for x, t in zip(xs, ts): a(f"{op} {x}, {x}, {t}")
    def bf16r(d, s_):
        a(f"v_cvt_pk_bf16_f32 {d}, {s_}, {s_}\nv_and_b32 {d}, 0xffff0000, {d}")
    def stamp(idx, perwave=False, val=None, hi='0'):
        if not stamps: return
        if val is None:
            a("s_memrealtime s[80:81]\ns_waitcnt lgkmcnt(0)")
        else:
            a(f"s_mov_b32 s80, {val}\ns_mov_b32 s81, {hi}")
        a(f"""v_mov_b32 v254, s80
        v_mov_b32 v255, s81
        s_lshl_b32 s82, s2, 8
        s_add_u32 s82, s82, {WS_DBG + idx*8}""")
        if perwave: a(f"s_lshl_b32 s83, {sWave}, 3\ns_add_u32 s82, s82, s83")
        a(f"""s_nop 0
        v_mov_b32 v253, s82
        s_mov_b64 s[84:85], exec
        s_mov_b64 exec, 1
        global_store_dwordx2 v253, v[254:255], s[74:75]
        s_mov_b64 exec, s[84:85]""")

    LS = {2: 94, 3: 96, 4: 98, 10: 100, 11: 46, 12: 48, 13: 50, 1: 6, 14: 62, 15: 72}
    def lstamp(idx):
        if not stamps: return
        a(f"s_memrealtime s[{LS[idx]}:{LS[idx]+1}]")
    def lflush(idxs):
        if not stamps: return
        a("s_waitcnt lgkmcnt(0)\ns_mov_b64 exec, -1")
        n = a.lab("lf")
        stamp(16, True, f"s{LS[2]}", f"s{LS[2]+1}")
        stamp(20, True, "s43")
        a(f"s_cmp_lg_u32 {sWave}, 0\ns_cbranch_scc1 {n}")
        for i in idxs: stamp(i, False, f"s{LS[i]}", f"s{LS[i]+1}")
        stamp(0, False, "s92", "s93")
        a(f"{n}:")
    def poll(name, loads, tagv, init=None, sleep=0):
        n = len(loads)
        for i in range(n):
            if init and init.get(i): a(f"s_mov_b32 s{76+2*i}, -1\ns_mov_b32 s{77+2*i}, 0")
            else: a(f"s_mov_b64 s[{76+2*i}:{77+2*i}], -1")
        a(f"s_mov_b32 {sSpin}, {SPIN}\nL_{name}_loop:")
        if sleep: a(f"s_sleep {sleep}")
        for i, (lt, tr) in enumerate(loads):
            a(f"s_mov_b64 exec, s[{76+2*i}:{77+2*i}]")
            if n > 1: a(f"s_cbranch_execz L_{name}_s{i}")
            for t in lt: a(t)
            if n > 1: a(f"L_{name}_s{i}:")
        a(f"s_sub_u32 {sSpin}, {sSpin}, 1\ns_waitcnt vmcnt(0)")
        for i, (lt, tr) in enumerate(loads):
            m = f"s[{76+2*i}:{77+2*i}]"
            if n > 1: a(f"s_mov_b64 exec, {m}")
            a(f"v_cmp_ne_u32 {m}, {tagv}, {tr[0]}")
            for r in tr[1:]:
                a(f"v_cmp_ne_u32 vcc, {tagv}, {r}\ns_or_b64 {m}, {m}, vcc")
            if n > 1:
                if i == 0: a(f"s_mov_b64 s[44:45], {m}")
                else: a(f"s_or_b64 s[44:45], s[44:45], {m}")
        if n > 1: a("s_cmp_lg_u64 s[44:45], 0")
        else: a("s_cmp_lg_u64 s[76:77], 0")
        a(f"""s_cbranch_scc0 L_{name}_ok
        s_cmp_lg_u32 {sSpin}, 0
        s_cbranch_scc1 L_{name}_loop
        L_{name}_ok:
        s_mov_b64 exec, -1""")
    def dst(idx):
        if not dstamp: return
        n = a.lab("ds")
        a(f"""s_cmp_lg_u32 s2, 0
        s_cbranch_scc1 {n}
        s_memrealtime s[80:81]
        s_waitcnt lgkmcnt(0)
        s_sub_u32 s80, s80, s92
        v_mov_b32 v254, s80
        v_mov_b32 v253, {idx*4}
        s_mov_b64 s[84:85], exec
        s_mov_b64 exec, 1
        global_store_dword v253, v254, s[72:73]
        s_mov_b64 exec, s[84:85]
        {n}:""")
    if dstamp or stamps: a("s_memrealtime s[92:93]")
    a(f"""s_cmp_ge_u32 s2, 256
    s_cbranch_scc1 L_end
    s_load_dwordx16 s[52:67], s[0:1], 0
    s_load_dwordx8 s[68:75], s[0:1], 64""")
    if hmap == 'mod':
        a("s_and_b32 s4, s2, 31\ns_lshl_b32 s4, s4, 3\ns_lshr_b32 s5, s2, 5\ns_or_b32 s2, s4, s5")
    a(f"""
    v_lshrrev_b32 v1, 6, v0
    v_and_b32 v0, 63, v0
    s_lshr_b32 {sHead}, s2, 3
    v_readfirstlane_b32 {sWave}, v1
    s_and_b32 {sSplit}, s2, 7""")
    a("""v_and_b32 v20, 15, v0
    v_lshrrev_b32 v21, 4, v0
    v_and_b32 v22, 1, v0
    v_mov_b32 v23, 0xffff
    v_lshlrev_b32 v22, 4, v22
    v_lshlrev_b32 v23, v22, v23
    v_lshrrev_b32 v22, 1, v20""")
    for j in range(4):
        a(f"v_cmp_eq_u32 vcc, {j}, v22\ns_nop 1\nv_cndmask_b32 v{16+j}, 0, v23, vcc")
    a("s_waitcnt lgkmcnt(0)")
    a(f"s_load_dword {sTag}, s[74:75], {WS_E}")
    srd(16, "s74", "s75", None, hex(WS_SIZE))
    XB, WQ, HA, HD = 24, 64, 32, 40
    a(f"s_cmp_lg_u32 {sWave}, 0\ns_cbranch_scc1 L_stream")
    srd(28, "s52", "s53", None, 1024)
    srd(20, "s58", "s59", None, "0x400000")
    a(f"""v_lshlrev_b32 v2, 4, v0
    s_lshl_b32 s38, {sSplit}, 19
    s_lshl_b32 s39, {sHead}, 8
    s_add_u32 s38, s38, s39
    v_lshlrev_b32 v3, 17, v21
    v_lshl_add_u32 v3, v20, 4, v3
    s_cmp_lg_u32 {sSplit}, 0
    s_cbranch_scc1 L_noinit
    s_lshl_b32 s39, {sHead}, 9
    s_add_u32 s39, s39, {WS_CTR}
    v_mov_b32 v4, 0
    s_mov_b64 exec, 1
    buffer_store_dword v4, v4, s[16:19], s39 offen sc1
    s_mov_b64 exec, -1
    L_noinit:
    buffer_load_dwordx4 v[8:11], v2, s[28:31], 0 offen""")
    for t in range(16):
        a(f"buffer_load_dwordx4 v[{WQ+4*t}:{WQ+4*t+3}], v3, s[20:23], s38 offen {wpol}")
        if t < 15: a("s_add_u32 s38, s38, 8192")
    a("s_barrier\ns_branch L_helper")

    a("L_stream:")
    vKo, vVo, vL, vM, vMC, vC = "v1", "v2", "v3", "v4", "v5", "v6"
    ACC, D, MK, Q, AP, SL = 8, 12, 16, 24, 40, 56
    E = AP
    vS, vT, vP, vU = "v20", "v21", "v22", "v23"
    vOa, vOb, vSW, vSR, vCL, vKM = "v248", "v249", "v250", "v251", "v252", "v253"
    sGt, sSt, sTrig, sMine, sNC, sIC, sTaken, sRound = "s80", "s81", "s82", "s83", "s84", "s85", "s86", "s87"
    RA, RB = "s[88:89]", "s[90:91]"
    sPend, sPR, sW8, sSB = "s24", "s25", "s26", "s27"
    vKA = "v254"
    a(f"""s_sub_u32 {sWave}, {sWave}, 1
    s_lshl_b32 s38, {sHead}, 24
    s_add_u32 s76, s54, s38
    s_addc_u32 s77, s55, 0""")
    srd(8, "s76", "s77", None, "0x1000000")
    srd(12, "s76", "s77", "4096", "0x1000000")
    a(f"""v_and_b32 v7, 3, v0
    v_bfe_u32 v22, v0, 2, 2
    v_lshlrev_b32 {vOa}, 8, v22
    v_lshl_add_u32 {vOa}, v21, 6, {vOa}
    v_lshl_add_u32 {vOa}, v7, 4, {vOa}
    v_mov_b32 {vOb}, {vOa}
    s_lshl_b32 {sW8}, {sWave}, 13
    s_mul_i32 {sOff}, {sSplit}, {ST*32768}
    s_add_u32 {sOff}, {sOff}, {sW8}
    s_mov_b32 {sStep}, 32768
    s_or_b32 s39, {sOff}, {ST}
    s_barrier""")
    lstamp(13)
    vq = []
    def wait_for(tag):
        idx = max(i for i, t in enumerate(vq) if t == tag)
        n = len(vq) - 1 - idx
        assert n <= 63
        a(f"s_waitcnt vmcnt({n})")
    def issue(slot, half, tag):
        r = SL + slot * 32 + 16 * half
        for i in range(4):
            a(f"buffer_load_dwordx4 v[{r+4*i}:{r+4*i+3}], {vOb if half else vOa}, s[{12 if half else 8}:{15 if half else 11}], {sOff} offen offset:{i*1024} {pol}")
            vq.append((half, tag))
    rare = []
    def atomic():
        a(f"s_call_b64 {RB}, L_claim")
    def pre():
        n = a.lab("x")
        a(f"s_cmp_lg_u32 {sLeft}, 0\ns_cbranch_scc1 {n}\ns_call_b64 {RA}, L_switch\n{n}:")
    def adv():
        a(f"""s_add_u32 s38, {sOff}, 8192
        s_and_b32 s38, s38, 0x6000
        s_andn2_b32 {sOff}, {sOff}, 0x6000
        s_or_b32 {sOff}, {sOff}, s38
        s_add_u32 {sOff}, {sOff}, {sStep}""")
    def post(slot):
        n = a.lab("na")
        adv()
        a(f"""s_mov_b32 s{44+slot}, {sGt}
        s_and_b32 {sGt}, {sGt}, 3
        s_sub_u32 {sLeft}, {sLeft}, 1
        s_cmp_lg_u32 {sLeft}, {sTrig}
        s_cbranch_scc1 {n}""")
        atomic()
        a(f"""{n}:
        s_cmp_lg_u32 {sLeft}, {sMine}
        s_cbranch_scc1 {n}p
        s_call_b64 {RB}, L_publish
        {n}p:""")
    issued = 0
    for t in range(S):
        for half in range(2):
            if issued >= F0: a(f"s_waitcnt vmcnt({F0-4})")
            issue(t, half, t)
            issued += 4
            if t == 0 and half == 1:
                a(f"""v_writelane_b32 {vCL}, s39, 0
                s_add_u32 s78, s56, s38
                s_addc_u32 s79, s57, 0
                s_lshl_b32 s38, {sHead}, 9
                s_add_u32 s38, s38, {WS_CTR}
                s_add_u32 s32, s74, s38
                s_addc_u32 s33, s75, 0
                s_mov_b32 {sLeft}, {ST - S}
                s_mov_b32 {sGt}, 0
                s_mov_b32 {sSt}, 0
                s_mov_b32 {sTrig}, {A}
                s_mov_b32 {sMine}, -1
                s_mov_b32 {sNC}, 1
                s_mov_b32 {sIC}, 0
                s_mov_b32 {sTaken}, {ST}
                s_mov_b32 {sRound}, 0
                v_mov_b32 {vKA}, {L_CL}
                v_mov_b32 {vKo}, {vOa}
                v_lshlrev_b32 {vVo}, 4, v0
                v_mov_b32 {vL}, 0
                v_mov_b32 {vM}, 0xff800000
                v_mov_b32 {vMC}, 0xff800000
                v_mov_b32 {vKM}, 0xff800000
                v_mov_b32 {vC}, 0x3fb8aa3b
                v_mov_b32 v{ACC}, 0
                v_mov_b32 v{ACC+1}, 0
                v_mov_b32 v{ACC+2}, 0
                v_mov_b32 v{ACC+3}, 0
                v_lshl_add_u32 v7, v21, 2, v7
                v_lshlrev_b32 v7, 4, v7
                s_mul_i32 {sSB}, {sWave}, {CAP*64}
                s_add_u32 {sSB}, {sSB}, {L_SC}
                v_and_b32 {vSW}, 60, v0
                v_add_u32 {vSW}, {sSB}, {vSW}""")
                if stamps: a("s_mov_b32 s43, 0\ns_mov_b32 s62, 0")
        adv()
    a(f"""s_waitcnt lgkmcnt(0)
    s_add_u32 {sTag}, {sTag}, 0x9e3779b9
    s_barrier
    ds_read_b128 v[{D}:{D+3}], v7 offset:{L_Q}""")
    lstamp(1)
    a("s_waitcnt lgkmcnt(0)")
    for b in range(4):
        a(f"v_cmp_eq_u32 vcc, {b}, v22\ns_nop 1")
        for j in range(4):
            a(f"v_cndmask_b32 v{Q+4*b+j}, 0, v{D+j}, vcc")
    a("s_nop 1")
    def wv(half, tag):
        if tag is None: a("s_waitcnt vmcnt(12)")
        else: wait_for((half, tag))
    def qk(dst, kb):
        for b in range(4):
            c = "0" if b == 0 else f"v[{dst}:{dst+3}]"
            a(f"v_mfma_f32_16x16x32_bf16 v[{dst}:{dst+3}], v[{kb+4*b}:{kb+4*b+3}], v[{Q+4*b}:{Q+4*b+3}], {c}")
    def diag(dst, d, t):
        a(f"""v_mov_b32_dpp {dst}, v{d} quad_perm:[0,0,0,0] {DPPF}
        v_mov_b32_dpp {t}, v{d+2} quad_perm:[2,2,2,2] {DPPF}
        s_nop 0
        v_add_f32_dpp {dst}, v{d+1}, {dst} quad_perm:[1,1,1,1] {DPPF}
        v_add_f32_dpp {t}, v{d+3}, {t} quad_perm:[3,3,3,3] {DPPF}
        v_add_f32 {dst}, {dst}, {t}""")
    def buildP(u):
        for b in range(4):
            for j in range(4):
                a(f"v_and_b32_dpp v{AP+4*b+j}, {u}, v{MK+j} row_newbcast:{4*b} {DPPF}")
    def pv(vb):
        for b in range(4):
            a(f"v_mfma_f32_16x16x32_bf16 v[{ACC}:{ACC+3}], v[{AP+4*b}:{AP+4*b+3}], v[{vb+4*b}:{vb+4*b+3}], v[{ACC}:{ACC+3}]")
    def cnt():
        if stamps: a("s_add_u32 s43, s43, 1")
    def consumeK(slot, tag, reissue):
        kb = SL + slot * 32
        wv(0, tag); qk(D, kb)
        if reissue is not None: pre(); issue(slot, 0, reissue)
        wv(1, tag); qk(E, kb + 16)
        if reissue is not None: issue(slot, 1, reissue); post(slot)
        else: a("s_nop 2")
        diag("v20", D, "v22")
        diag("v21", E, "v22")
        a(f"""v_cvt_pk_bf16_f32 v22, v20, v21
        v_lshlrev_b32 v20, 16, v22
        v_and_b32 v21, 0xffff0000, v22
        v_mul_f32 v20, 0x3db504f3, v20
        v_mul_f32 v21, 0x3db504f3, v21
        v_cvt_pk_bf16_f32 v22, v20, v21
        ds_write_b32 {vSW}, v22
        v_add_u32 {vSW}, 64, {vSW}
        v_lshlrev_b32 v20, 16, v22
        v_and_b32 v21, 0xffff0000, v22
        v_max3_f32 {vKM}, v20, v21, {vKM}""")
        cnt()
    def consumeV(slot):
        vb = SL + slot * 32
        a(f"""ds_read_b32 v20, {vSR}
        v_add_u32 {vSR}, 64, {vSR}
        s_waitcnt lgkmcnt(0)
        v_lshlrev_b32 v21, 16, v20
        v_and_b32 v22, 0xffff0000, v20
        v_fma_f32 v21, v21, {vC}, -{vMC}
        v_fma_f32 v22, v22, {vC}, -{vMC}
        v_exp_f32 v21, v21
        v_exp_f32 v22, v22
        v_cvt_pk_bf16_f32 v20, v21, v21
        v_cvt_pk_bf16_f32 v23, v22, v22
        v_add_f32 {vL}, {vL}, v21
        v_add_f32 {vL}, {vL}, v22""")
        buildP("v20")
        wv(0, None); pv(vb)
        pre(); issue(slot, 0, "x")
        buildP("v23")
        wv(1, None); pv(vb + 16)
        issue(slot, 1, "x"); post(slot)
        cnt()
    def consumeM(slot):
        kb = SL + slot * 32
        wv(0, None); qk(D, kb)
        pre(); issue(slot, 0, "x"); a("s_nop 1")
        n = a.lab("r"); rare.append(n)
        diag(vS, D, vT)
        a(f"""v_cvt_pk_bf16_f32 {vS}, {vS}, {vS}
        v_and_b32 {vS}, 0xffff0000, {vS}
        v_mul_f32 {vS}, 0x3db504f3, {vS}
        v_cvt_pk_bf16_f32 {vS}, {vS}, {vS}
        v_and_b32 {vS}, 0xffff0000, {vS}
        v_cmp_gt_f32 vcc, {vS}, {vM}
        s_cbranch_vccnz {n}_rare
        {n}_bk:
        v_fma_f32 {vT}, {vS}, {vC}, -{vMC}
        v_exp_f32 {vP}, {vT}
        s_nop 0
        v_cvt_pk_bf16_f32 {vU}, {vP}, {vP}
        v_add_f32 {vL}, {vL}, {vP}
        s_nop 0""")
        buildP(vU)
        wv(1, None); pv(kb + 16)
        issue(slot, 1, "x"); post(slot)
        cnt()
    WO = SL + 2 * 32
    consumeK(0, 0, "A")
    consumeK(1, 1, "B")
    for t in range(2, S):
        consumeK(t, t, None)
        if t == 2:
            a(f"""s_lshl_b32 s38, s2, 14
            s_lshl_b32 s39, {sWave}, 8
            s_add_u32 s38, s38, s39""")
            srd(20, "s60", "s61", None, "0x400000")
            a("v_lshlrev_b32 v7, 2, v0")
            for d in range(16):
                if d and d % 4 == 0: a("s_add_u32 s38, s38, 4096")
                a(f"buffer_load_dword v{WO+d}, v7, s[20:23], s38 offen offset:{(d%4)*1024} {wpol}")
                vq.append(("W", 0))
    consumeK(0, "A", "C")
    consumeK(1, "B", "D")
    WU = SL + 3 * 32
    wait_for(("W", 0))
    for d in range(16):
        a(f"v_lshlrev_b32 v{WU+2*d}, 16, v{WO+d}\nv_and_b32 v{WU+2*d+1}, 0xffff0000, v{WO+d}")
    for slot in range(2):
        nxt = f"L_s{1-slot}"
        a(f"""L_s{slot}:
        s_cmp_eq_u32 s{44+slot}, 1
        s_cbranch_scc1 L_V{slot}
        s_cmp_eq_u32 s{44+slot}, 2
        s_cbranch_scc1 L_M{slot}
        s_cmp_lg_u32 s{44+slot}, 0
        s_cbranch_scc1 L_X{slot}""")
        consumeK(slot, None, "x")
        if slot == 1: a(f"s_branch {nxt}")
    for slot in range(2):
        nxt = f"L_s{1-slot}"
        a(f"""L_X{slot}:
        s_cmp_eq_u32 s{44+slot}, 3
        s_cbranch_scc1 L_done""")
        if stamps: a(f's_cmp_lg_u32 s62, 0\ns_cbranch_scc1 L_ns{slot}'); lstamp(14); a(f'L_ns{slot}:')
        ror("v_max_f32", vKM, 4); ror("v_max_f32", vKM, 8)
        xrow("v_max_f32", vKM, vU)
        a(f"""v_max_f32 {vM}, {vM}, {vKM}
        v_mul_f32 {vT}, {vM}, {vC}
        v_sub_f32 {vU}, {vMC}, {vT}
        v_exp_f32 {vU}, {vU}
        v_mov_b32 {vMC}, {vT}
        v_and_b32 {vSW}, 60, v0
        v_add_u32 {vSW}, {sSB}, {vSW}
        v_mov_b32 {vSR}, {vSW}
        v_mul_f32 {vL}, {vL}, {vU}
        v_mul_f32 v{ACC}, v{ACC}, {vU}
        v_mul_f32 v{ACC+1}, v{ACC+1}, {vU}
        v_mul_f32 v{ACC+2}, v{ACC+2}, {vU}
        v_mul_f32 v{ACC+3}, v{ACC+3}, {vU}
        L_V{slot}:""")
        consumeV(slot)
        a(f"s_branch {nxt}\nL_M{slot}:")
        consumeM(slot)
        a(f"s_branch {nxt}")
    a(f"""L_claim:
    v_mov_b32 v7, 1
    s_mov_b64 exec, 1
    ds_add_rtn_u32 v7, {vKA}, v7 offset:8
    s_mov_b64 exec, -1
    s_waitcnt lgkmcnt(0)
    v_readfirstlane_b32 s38, v7
    s_nop 0
    s_cmp_lg_u32 s38, 0
    s_cbranch_scc1 L_claim_r
    s_mov_b32 {sMine}, 0
    s_mov_b32 {sAt}, 1
    s_atomic_add {sAt}, s[32:33], 0 glc
    L_claim_r:
    s_setpc_b64 {RB}
    L_publish:
    s_waitcnt lgkmcnt(0)
    s_add_u32 s38, {sAt}, 1
    v_mov_b32 v7, s38
    s_mov_b32 {sMine}, -1
    ds_write_b32 {vKA}, v7 offset:12
    s_setpc_b64 {RB}""")
    a(f"""L_switch:
    s_cmp_eq_u32 {sSt}, 1
    s_cbranch_scc1 L_swV
    s_mov_b32 {sSpin}, {SPIN*64}
    L_need:
    ds_read_b32 v7, {vKA} offset:12
    ds_read_b32 v255, {vKA} offset:{0 if sync == 1 else 8}
    s_sub_u32 {sSpin}, {sSpin}, 1
    s_waitcnt lgkmcnt(0)
    v_readfirstlane_b32 {sAt}, v7
    v_readfirstlane_b32 s38, v255
    s_cmp_eq_u32 {sSpin}, 0
    s_cbranch_scc1 L_needx
    s_cmp_eq_u32 {sAt}, 0
    s_cbranch_scc1 L_need
    s_cmp_lt_u32 s38, {4 if sync else 0}
    s_cbranch_scc1 L_need
    L_needx:
    v_add_u32 {vKA}, 8, {vKA}
    s_sub_u32 {sAt}, {sAt}, 1
    s_cmp_lt_u32 {sAt}, {NK}
    s_cbranch_scc1 L_decK
    s_mov_b32 {sPR}, 101
    s_cmp_ge_u32 {sAt}, {NALL}
    s_cbranch_scc1 L_dec
    s_mov_b32 {sPR}, 100
    s_add_u32 s38, {sAt}, {2*NS - NK}
    s_add_u32 s39, s38, {sWave}
    s_and_b32 s39, s39, 3
    s_lshl_b32 s39, s39, 12
    s_lshl_b32 s38, s38, 14
    s_add_u32 {sPend}, s38, s39
    s_branch L_dec
    L_decK:""")
    a(f"s_mov_b32 {sPend}, {sched[0][0]}\ns_mov_b32 s38, {ST*8}\ns_mov_b32 s39, 0\ns_mov_b32 {sPR}, {sched[0][2]}")
    ci = 0; cu = ST * 8
    for k in range(1, len(sched)):
        ci += sched[k-1][1]; cu += sched[k-1][0] * sched[k-1][1]
        a(f"s_cmp_ge_u32 {sAt}, {ci}\ns_cselect_b32 {sPend}, {sched[k][0]}, {sPend}\ns_cselect_b32 s38, {cu}, s38\ns_cselect_b32 s39, {ci}, s39")
        if sched[k][2] != sched[k-1][2]: a(f"s_cselect_b32 {sPR}, {sched[k][2]}, {sPR}")
    a(f"""s_sub_u32 s39, {sAt}, s39
    s_mul_i32 s39, s39, {sPend}
    s_add_u32 s38, s38, s39
    s_add_u32 s39, s38, {sWave}
    s_and_b32 s39, s39, 3
    s_lshl_b32 s39, s39, 13
    s_lshl_b32 s38, s38, 15
    s_add_u32 s38, s38, s39
    s_add_u32 s39, {sTaken}, {sPend}
    s_or_b32 {sPend}, {sPend}, s38
    s_cmp_gt_u32 s39, {CAP}
    s_cbranch_scc1 L_toV
    s_cmp_ge_u32 {sNC}, 64
    s_cbranch_scc1 L_toV
    s_cmp_eq_u32 {sPR}, {sRound}
    s_cbranch_scc1 L_startK
    L_dec:
    s_cmp_eq_u32 {sSt}, 2
    s_cbranch_scc1 L_take
    L_toV:
    s_mov_b32 {sSt}, 1
    s_mov_b32 {sGt}, 5
    s_mov_b32 {sIC}, 0
    s_mov_b32 {sTrig}, -1
    s_mov_b32 s8, s78
    s_mov_b32 s9, s79
    s_add_u32 s12, s78, 4096
    s_addc_u32 s13, s79, 0
    v_mov_b32 {vOa}, {vVo}
    v_mov_b32 {vOb}, {vVo}
    L_swV:
    s_cmp_eq_u32 {sIC}, {sNC}
    s_cbranch_scc1 L_endV
    v_readlane_b32 s38, {vCL}, {sIC}
    s_add_u32 {sIC}, {sIC}, 1
    s_nop 0
    s_and_b32 {sLeft}, s38, 0x1fff
    s_andn2_b32 {sOff}, s38, 0x1fff
    s_setpc_b64 {RA}
    L_endV:
    s_mov_b32 s8, s76
    s_mov_b32 s9, s77
    v_mov_b32 {vOa}, {vKo}
    s_cmp_ge_u32 {sPR}, 100
    s_cbranch_scc1 L_toM
    s_mov_b32 {sSt}, 0
    s_mov_b32 {sGt}, 0
    s_mov_b32 {sNC}, 0
    s_mov_b32 {sTaken}, 0
    s_cmp_eq_u32 {sPR}, 50
    s_cselect_b32 {sRound}, 51, {sPR}
    s_add_u32 s12, s76, 4096
    s_addc_u32 s13, s77, 0
    v_mov_b32 {vOb}, {vKo}
    L_startK:
    s_mov_b32 m0, {sNC}
    s_and_b32 {sLeft}, {sPend}, 0x1fff
    v_writelane_b32 {vCL}, {sPend}, m0
    s_andn2_b32 {sOff}, {sPend}, 0x1fff
    s_add_u32 {sTaken}, {sTaken}, {sLeft}
    s_add_u32 {sNC}, {sNC}, 1
    s_branch L_arm
    L_toM:
    s_mov_b32 {sSt}, 2
    s_mov_b32 {sGt}, 2
    s_mov_b32 s12, s78
    s_mov_b32 s13, s79""")
    lstamp(15)
    a(f"""L_take:
    s_cmp_eq_u32 {sPR}, 100
    s_cbranch_scc1 L_takeM
    s_mov_b32 {sOff}, 0x1000000
    s_mov_b32 {sLeft}, 0x100000
    s_mov_b32 {sStep}, 0
    s_mov_b32 {sGt}, 3
    s_mov_b32 {sTrig}, -1
    s_setpc_b64 {RA}
    L_takeM:
    s_mov_b32 {sOff}, {sPend}
    s_mov_b32 {sLeft}, 1
    L_arm:
    s_mov_b32 {sTrig}, {A}
    s_cmp_gt_u32 {sLeft}, {A}
    s_cbranch_scc1 L_ret""")
    atomic()
    a(f"L_ret:\ns_setpc_b64 {RA}")
    for n in rare:
        a(f"{n}_rare:\nv_mov_b32 {vT}, {vS}")
        ror("v_max_f32", vT, 4); ror("v_max_f32", vT, 8)
        xrow("v_max_f32", vT, vU)
        a(f"""v_max_f32 {vM}, {vM}, {vT}
        v_mul_f32 {vT}, {vM}, {vC}
        v_sub_f32 {vU}, {vMC}, {vT}
        v_exp_f32 {vU}, {vU}
        v_mov_b32 {vMC}, {vT}
        v_mul_f32 {vL}, {vL}, {vU}
        v_mul_f32 v{ACC}, v{ACC}, {vU}
        v_mul_f32 v{ACC+1}, v{ACC+1}, {vU}
        v_mul_f32 v{ACC+2}, v{ACC+2}, {vU}
        v_mul_f32 v{ACC+3}, v{ACC+3}, {vU}
        s_branch {n}_bk""")
    a("L_done:")
    lstamp(2); dst(2)
    ror("v_add_f32", vL, 4); ror("v_add_f32", vL, 8)
    xrow("v_add_f32", vL, vT)
    a(f"""v_and_b32 v20, 15, v0
    v_lshrrev_b32 v21, 4, v0
    v_lshlrev_b32 v22, 5, v20
    v_lshl_add_u32 v22, v21, 4, v22
    s_lshl_b32 s38, {sWave}, 9
    v_add_u32 v22, s38, v22
    s_lshl_b32 s38, {sWave}, 3
    v_mov_b32 v23, s38
    v_mov_b32 v6, {vMC}
    v_mov_b32 v7, {vL}
    s_mov_b32 exec_hi, 0
    ds_write_b128 v22, v[{ACC}:{ACC+3}] offset:{L_P}
    s_mov_b64 exec, 1
    ds_write_b64 v23, v[6:7] offset:{L_ML}
    s_mov_b64 exec, -1
    v_mov_b32 v1, {sTag}""")
    vTag = "v1"
    a(f"""s_waitcnt lgkmcnt(0)
    s_barrier""")
    lstamp(10)
    a(f"""s_cmp_lg_u32 {sWave}, 0
    s_cbranch_scc1 L_bsum
    v_lshlrev_b32 v2, 3, v0
    v_mov_b32 v3, 0
    ds_read_b128 v[24:27], v3 offset:{L_ML}
    ds_read_b128 v[28:31], v3 offset:{L_ML+16}
    ds_read_b64 v[32:33], v2 offset:{L_P}
    ds_read_b64 v[34:35], v2 offset:{L_P+512}
    ds_read_b64 v[36:37], v2 offset:{L_P+1024}
    ds_read_b64 v[38:39], v2 offset:{L_P+1536}
    s_waitcnt lgkmcnt({0 if stamps else 4})
    v_max_f32 v8, v24, v26
    v_max3_f32 v8, v28, v30, v8
    v_sub_f32 v24, v24, v8
    v_sub_f32 v26, v26, v8
    v_sub_f32 v28, v28, v8
    v_sub_f32 v30, v30, v8
    v_exp_f32 v24, v24
    v_exp_f32 v26, v26
    v_exp_f32 v28, v28
    v_exp_f32 v30, v30
    v_mov_b32 v9, {vTag}
    v_mul_f32 v10, v24, v25
    v_fmac_f32 v10, v26, v27
    v_fmac_f32 v10, v28, v29
    v_fmac_f32 v10, v30, v31
    v_mov_b32 v11, {vTag}
    s_waitcnt lgkmcnt(0)
    v_mul_f32 v12, v24, v32
    v_mul_f32 v14, v24, v33
    v_fmac_f32 v12, v26, v34
    v_fmac_f32 v14, v26, v35
    v_fmac_f32 v12, v28, v36
    v_fmac_f32 v14, v28, v37
    v_fmac_f32 v12, v30, v38
    v_fmac_f32 v14, v30, v39
    v_mov_b32 v13, {vTag}
    v_mov_b32 v15, {vTag}
    v_lshlrev_b32 v2, 4, v0
    s_lshl_b32 s38, s2, 11
    s_add_u32 s38, s38, {WS_H1}
    buffer_store_dwordx4 v[12:15], v2, s[16:19], s38 offen sc1
    s_mov_b64 exec, 1
    buffer_store_dwordx4 v[8:11], v2, s[16:19], s38 offen offset:1024 sc1
    s_mov_b64 exec, -1""")
    lstamp(11)
    a(f"""v_lshrrev_b32 v2, 3, v0
    v_lshlrev_b32 v3, 11, v2
    v_and_b32 v4, 7, v0
    v_lshl_add_u32 v2, v4, 4, v3
    s_lshl_b32 s38, {sHead}, 14
    s_add_u32 s38, s38, {WS_H1}
    s_lshl_b32 s39, {sSplit}, 7
    s_add_u32 s39, s39, s38""")
    poll("h1", [(["buffer_load_dwordx4 v[24:27], v2, s[16:19], s39 offen sc1",
                  "buffer_load_dwordx4 v[28:31], v3, s[16:19], s38 offen offset:1024 sc1"], ["v25", "v27", "v29", "v31"])], vTag, sleep=h1sleep)
    lstamp(3); dst(3)
    a("v_mov_b32 v20, v28")
    ror("v_max_f32", "v20", 8); xrow("v_max_f32", "v20", "v21")
    a("""v_sub_f32 v28, v28, v20
    v_exp_f32 v28, v28
    s_nop 0
    v_mul_f32 v8, v24, v28
    v_mul_f32 v9, v26, v28
    v_mul_f32 v10, v30, v28""")
    red3(["v8", "v9", "v10"], ["v20", "v21", "v22"])
    a(f"""v_rcp_f32 v10, v10
    s_nop 0
    v_mul_f32 v8, v8, v10
    v_mul_f32 v9, v9, v10""")
    bf16r("v8", "v8"); bf16r("v9", "v9")
    a(f"""v_lshlrev_b32 v2, 3, v0
    s_mov_b64 exec, 0xff
    ds_write_b64 v2, v[8:9] offset:{L_O}
    s_mov_b64 exec, -1
    s_waitcnt lgkmcnt(0)
    L_h1wait:
    v_mov_b32 v3, 0
    v_and_b32 v4, 7, v0
    s_barrier
    ds_read_b128 v[24:27], v3 offset:{L_O}
    ds_read_b128 v[28:31], v3 offset:{L_O+16}
    ds_read_b128 v[32:35], v3 offset:{L_O+32}
    ds_read_b128 v[36:39], v3 offset:{L_O+48}
    s_waitcnt lgkmcnt({0 if stamps else 3})
    v_mul_f32 v12, v24, v{WU}
    v_mul_f32 v14, v24, v{WU+1}""")
    for d in range(1, 16):
        if d % 4 == 0 and not stamps: a(f"s_waitcnt lgkmcnt({3 - d//4})")
        a(f"v_fmac_f32 v12, v{24+d}, v{WU+2*d}\nv_fmac_f32 v14, v{24+d}, v{WU+2*d+1}")
    a(f"""v_mov_b32 v13, {vTag}
    v_mov_b32 v15, {vTag}
    v_lshrrev_b32 v2, 3, v0
    v_lshlrev_b32 v2, 16, v2
    v_lshl_add_u32 v2, v4, 4, v2
    s_lshl_b32 s38, {sWave}, 19
    s_lshl_b32 s39, s2, 7
    s_add_u32 s38, s38, s39
    s_add_u32 s38, s38, {WS_H2}
    buffer_store_dwordx4 v[12:15], v2, s[16:19], s38 offen sc1""")
    lstamp(12)
    a(f"""s_and_b32 s38, {sHead}, 7
    s_cmp_lg_u32 s38, {sSplit}
    s_cbranch_scc1 {'L_end1' if stamps else 'L_end'}""")
    srd(28, "s52", "s53", None, 1024)
    a(f"""v_lshlrev_b32 v5, 1, v0
    s_lshl_b32 s42, {sHead}, 5
    buffer_load_ushort v6, v5, s[28:31], s42 offen
    v_lshlrev_b32 v2, 4, v0
    s_lshl_b32 s38, {sHead}, 16
    s_lshl_b32 s39, {sWave}, 13
    s_add_u32 s38, s38, s39
    s_add_u32 s38, s38, {WS_H2}
    s_add_u32 s39, s38, 4096
    """)
    poll("h2", [([f"buffer_load_dwordx4 v[{24+4*i}:{27+4*i}], v2, s[16:19], {'s38' if i < 4 else 's39'} offen offset:{(i%4)*1024} sc1"], [f"v{25+4*i}", f"v{27+4*i}"]) for i in range(8)], vTag, sleep=h2sleep)
    lstamp(4); dst(4)
    a("v_add_f32 v8, v24, v28\nv_add_f32 v9, v26, v30")
    for i in range(2, 8):
        a(f"v_add_f32 v8, v8, v{24+4*i}\nv_add_f32 v9, v9, v{26+4*i}")
    red3(["v8", "v9"], ["v20", "v21"])
    a(f"""s_lshl_b32 s38, {sWave}, 6
    v_lshl_add_u32 v2, v0, 3, s38
    s_mov_b64 exec, 0xff
    ds_write_b64 v2, v[8:9] offset:{L_R}
    s_mov_b64 exec, -1
    s_waitcnt lgkmcnt(0)
    s_barrier
    s_cmp_lg_u32 {sWave}, 0
    s_cbranch_scc1 {'L_end1' if stamps else 'L_end'}
    v_and_b32 v2, 15, v0
    v_lshlrev_b32 v2, 2, v2
    ds_read_b32 v8, v2 offset:{L_R}
    ds_read_b32 v9, v2 offset:{L_R+64}
    ds_read_b32 v10, v2 offset:{L_R+128}
    ds_read_b32 v11, v2 offset:{L_R+192}
    ds_read_b32 v12, v2 offset:{L_B}""")
    srd(24, "s70", "s71", None, 1024)
    a(f"""v_lshlrev_b32 v6, 16, v6
    s_waitcnt lgkmcnt(0)
    v_add_f32 v8, v8, v9
    v_add_f32 v10, v10, v11
    v_add_f32 v8, v8, v10""")
    bf16r("v8", "v8")
    a("v_add_f32 v8, v6, v8")
    bf16r("v8", "v8")
    a(f"""v_add_f32 v8, v8, v12
    v_cvt_pk_bf16_f32 v8, v8, v8
    s_mov_b64 exec, 0xffff
    buffer_store_short v8, v5, s[24:27], s42 offen
    s_cmp_lg_u32 {sHead}, 0
    s_cbranch_scc1 L_fin
    s_mov_b64 exec, 1
    v_mov_b32 v2, {WS_E}
    buffer_store_dword {vTag}, v2, s[16:19], 0 offen sc1
    L_fin:""")
    stamp(5); dst(5)
    if stamps:
        lflush([1, 2, 3, 4, 10, 11, 12, 13, 14, 15]); a("s_endpgm\nL_end1:"); lflush([1, 2, 3, 10, 11, 12, 13, 14, 15])
    a("s_endpgm")

    a(f"""L_bsum:
    s_cmp_lg_u32 {sWave}, 1
    s_cbranch_scc1 L_h1wait
    s_and_b32 s38, {sHead}, 7
    s_cmp_lg_u32 s38, {sSplit}
    s_cbranch_scc1 L_h1wait
    s_lshl_b32 s38, {sHead}, 16
    s_add_u32 s38, s38, {WS_H2 + 256*128}
    v_lshlrev_b32 v2, 4, v0
    v_mov_b32 v36, 0
    v_mov_b32 v38, 0""")
    if not noffn:
        poll("b", [([f"buffer_load_dwordx4 v[{24+4*i}:{27+4*i}], v2, s[16:19], s38 offen offset:{i*1024} sc1"], [f"v{25+4*i}", f"v{27+4*i}"]) for i in range(4)], vTag, init={3: True})
    a("""v_add_f32 v8, v24, v28
    v_add_f32 v9, v26, v30
    v_add_f32 v8, v8, v32
    v_add_f32 v9, v9, v34
    v_add_f32 v8, v8, v36
    v_add_f32 v9, v9, v38""")
    red3(["v8", "v9"], ["v20", "v21"])
    bf16r("v8", "v8"); bf16r("v9", "v9")
    a(f"""v_lshlrev_b32 v3, 3, v0
    s_mov_b64 exec, 0xff
    ds_write_b64 v3, v[8:9] offset:{L_B}
    s_mov_b64 exec, -1
    s_waitcnt lgkmcnt(0)
    s_branch L_h1wait""")

    a("L_helper:")
    sSelLo, sSelHi = "s42", "s43"
    if noqwait: a("s_barrier")
    a(f"""v_mov_b32 v12, 0
    v_mov_b32 v13, 0
    v_mov_b32 v14, 0
    v_mov_b32 v15, 0
    ds_write_b128 v2, v[12:15] offset:{L_CL}
    ds_write_b128 v2, v[12:15] offset:{L_VA}
    v_mov_b32 v13, 4
    ds_write_b32 v12, v13 offset:{L_CL}
    s_mov_b32 {sSelLo}, 0x01000100
    s_mov_b32 {sSelHi}, 0x03020302
    s_waitcnt vmcnt(16)""")
    for i in range(4):
        a(f"v_lshlrev_b32 v{48+2*i}, 16, v{8+i}\nv_and_b32 v{49+2*i}, 0xffff0000, v{8+i}")
    a("v_add_f32 v4, v48, v49")
    for i in range(2, 8): a(f"v_add_f32 v4, v4, v{48+i}")
    def allsum(x, t):
        for n in (8, 4, 2, 1): ror("v_add_f32", x, n)
        xrow("v_add_f32", x, t)
    allsum("v4", "v5")
    a(f"v_mul_f32 v4, {hex(f32bits(1/512))}, v4")
    a("v_sub_f32 v6, v48, v4\nv_mul_f32 v5, v6, v6")
    for i in range(1, 8): a(f"v_sub_f32 v6, v{48+i}, v4\nv_fmac_f32 v5, v6, v6")
    allsum("v5", "v6")
    a(f"v_mul_f32 v5, {hex(f32bits(1/512))}, v5")
    bf16r("v4", "v4"); bf16r("v5", "v5")
    a(f"v_add_f32 v5, {hex(bf16_round_bits(1e-5))}, v5")
    bf16r("v5", "v5")
    a("v_sqrt_f32 v5, v5\ns_nop 0")
    bf16r("v5", "v5")
    a("v_rcp_f32 v5, v5")
    for i in range(8):
        a(f"v_sub_f32 v{48+i}, v{48+i}, v4")
        bf16r(f"v{48+i}", f"v{48+i}")
        a(f"v_mul_f32 v{48+i}, v{48+i}, v5")
    for i in range(4):
        a(f"v_cvt_pk_bf16_f32 v{8+i}, v{48+2*i}, v{49+2*i}")
    a(f"""ds_write_b128 v2, v[8:11] offset:{L_XN}
    s_lshl_b32 s38, {sSplit}, 7
    v_lshl_add_u32 v4, v21, 5, s38
    s_waitcnt lgkmcnt(0)
    s_add_u32 {sTag}, {sTag}, 0x9e3779b9
    ds_read_b128 v[{XB}:{XB+3}], v4 offset:{L_XN}
    ds_read_b128 v[{XB+4}:{XB+7}], v4 offset:{L_XN+16}
    v_mov_b32 v1, {sTag}
    s_waitcnt lgkmcnt(0)""")
    def buildA(xreg, hi, aset, mk):
        a(f"v_perm_b32 v7, v{xreg}, v{xreg}, {sSelHi if hi else sSelLo}")
        for j in range(4): a(f"v_and_b32 v{HA+4*aset+j}, v7, v{mk+j}")
    buildA(XB, 0, 0, 16)
    for t in range(16):
        if t < 15: buildA(XB + (t+1)//2, (t+1) % 2, (t+1) % 2, 16)
        else: a("s_nop 1")
        a(f"s_waitcnt vmcnt({15-t})")
        c = "0" if t == 0 else f"v[{HD}:{HD+3}]"
        a(f"v_mfma_f32_16x16x32_bf16 v[{HD}:{HD+3}], v[{HA+4*(t%2)}:{HA+4*(t%2)+3}], v[{WQ+4*t}:{WQ+4*t+3}], {c}")
    def publish4(acc, voff, soff):
        a(f"""v_mov_b32 v8, v{acc}
        v_mov_b32 v10, v{acc+1}
        v_mov_b32 v12, v{acc+2}
        v_mov_b32 v14, v{acc+3}
        s_mov_b32 exec_hi, 0
        buffer_store_dwordx4 v[8:11], {voff}, s[16:19], {soff} offen sc1
        buffer_store_dwordx4 v[12:15], {voff}, s[16:19], {soff} offen offset:16 sc1
        s_mov_b64 exec, -1
        s_nop 1""")
    a(f"""v_lshlrev_b32 v4, 6, v20
    v_lshl_add_u32 v4, v21, 5, v4
    v_mov_b32 v9, v1
    v_mov_b32 v11, v1
    v_mov_b32 v13, v1
    v_mov_b32 v15, v1
    s_lshl_b32 s38, s2, 10
    s_add_u32 s38, s38, {WS_Q}
    s_nop 1""")
    publish4(HD, "v4", "s38")
    stamp(6); dst(6)
    a(f"""s_lshl_b32 s38, {sHead}, 13
    s_add_u32 s38, s38, {WS_Q}
    s_add_u32 s39, s38, 4096
    """)
    poll("q", [([f"buffer_load_dwordx4 v[{WQ+4*i}:{WQ+3+4*i}], v2, s[16:19], {'s38' if i < 4 else 's39'} offen offset:{(i%4)*1024} sc1"], [f"v{WQ+1+4*i}", f"v{WQ+3+4*i}"]) for i in range(8)], "v1", sleep=qsleep)
    a(f"""
    v_add_f32 v4, v{WQ}, v{WQ+4}
    v_add_f32 v5, v{WQ+2}, v{WQ+6}""")
    for i in range(2, 8):
        a(f"v_add_f32 v4, v4, v{WQ+4*i}\nv_add_f32 v5, v5, v{WQ+2+4*i}")
    a(f"""v_cvt_pk_bf16_f32 v4, v4, v5
    v_lshlrev_b32 v5, 2, v0
    ds_write_b32 v5, v4 offset:{L_Q}
    s_waitcnt lgkmcnt(0)""")
    stamp(9); dst(9)
    if not noqwait: a("s_barrier")
    if noffn: a("s_endpgm")
    a(f"""s_add_u32 s38, {sHead}, 3
    s_and_b32 s38, s38, 7
    s_cmp_lg_u32 s38, {sSplit}
    s_cbranch_scc1 L_noffn
    s_cmp_ge_u32 {sHead}, 28
    s_cbranch_scc1 L_noffn""")
    srd(20, "s64", "s65", None, 512*3584)
    srd(24, "s66", "s67", None, 512*3584)
    MK2 = 48
    a(f"""v_bfe_u32 v22, v0, 1, 2""")
    for j in range(4):
        a(f"v_cmp_eq_u32 vcc, {j}, v22\ns_nop 1\nv_cndmask_b32 v{MK2+j}, 0, v23, vcc")
    a(f"""v_lshrrev_b32 v3, 3, v0
    s_mov_b32 s38, {64*3584}
    v_mul_lo_u32 v4, v3, s38
    v_and_b32 v5, 7, v0
    v_lshl_add_u32 v4, v5, 4, v4
    v_lshlrev_b32 v3, 7, v3
    s_lshl_b32 s38, {sHead}, 7
    s_mov_b32 s39, 8""")
    for j in range(8): a(f"v_mov_b32 v{HD+j}, 0")
    a(f"""L_ffn1:
    ds_read_b128 v[{XB}:{XB+3}], v3 offset:{L_XN}""")
    for t in range(8):
        a(f"buffer_load_dwordx4 v[{WQ+8*t}:{WQ+8*t+3}], v4, s[20:23], s38 offen {wpol}")
        a(f"buffer_load_dwordx4 v[{WQ+8*t+4}:{WQ+8*t+7}], v4, s[24:27], s38 offen {wpol}")
        a("s_add_u32 s38, s38, 3584")
    a("v_add_u32 v3, 16, v3\ns_waitcnt lgkmcnt(0)")
    buildA(XB, 0, 0, MK2)
    for t in range(8):
        if t < 7: buildA(XB + (t+1)//2, (t+1) % 2, (t+1) % 2, MK2)
        else: a("s_nop 1")
        a(f"s_waitcnt vmcnt({14-2*t})")
        a(f"v_mfma_f32_16x16x32_bf16 v[{HD}:{HD+3}], v[{HA+4*(t%2)}:{HA+4*(t%2)+3}], v[{WQ+8*t}:{WQ+8*t+3}], v[{HD}:{HD+3}]")
        a(f"v_mfma_f32_16x16x32_bf16 v[{HD+4}:{HD+7}], v[{HA+4*(t%2)}:{HA+4*(t%2)+3}], v[{WQ+8*t+4}:{WQ+8*t+7}], v[{HD+4}:{HD+7}]")
    a(f"""s_sub_u32 s39, s39, 1
    s_cmp_lg_u32 s39, 0
    s_cbranch_scc1 L_ffn1""")
    a(f"""v_lshrrev_b32 v3, 5, v0
    v_bfe_u32 v4, v0, 3, 1
    v_cmp_eq_u32 vcc, v3, v4
    v_lshlrev_b32 v3, 8, v3
    v_lshl_add_u32 v3, v5, 5, v3
    v_bfe_u32 v4, v0, 4, 1
    v_lshl_add_u32 v3, v4, 4, v3
    s_nop 4
    s_mov_b64 exec, vcc
    ds_write_b128 v3, v[{HD}:{HD+3}] offset:{L_T}
    ds_write_b128 v3, v[{HD+4}:{HD+7}] offset:{L_T+512}
    s_mov_b64 exec, -1
    v_lshlrev_b32 v3, 2, v0
    s_waitcnt lgkmcnt(0)
    ds_read_b32 v4, v3 offset:{L_T}
    ds_read_b32 v5, v3 offset:{L_T+256}
    ds_read_b32 v6, v3 offset:{L_T+512}
    ds_read_b32 v7, v3 offset:{L_T+768}
    s_waitcnt lgkmcnt(0)
    v_add_f32 v4, v4, v5
    v_add_f32 v6, v6, v7""")
    bf16r("v4", "v4"); bf16r("v6", "v6")
    a(f"""v_cmp_lt_f32 vcc, 0, v4
    s_nop 1
    v_cndmask_b32 v5, 0, 1.0, vcc
    v_mul_f32 v4, v4, v5
    v_mul_f32 v4, v4, v6
    v_cvt_pk_bf16_f32 v4, v4, v4
    v_lshlrev_b32 v3, 1, v0
    ds_write_b16 v3, v4 offset:{L_H}
    v_lshlrev_b32 v3, 5, v21
    s_waitcnt lgkmcnt(0)
    ds_read_b128 v[{XB}:{XB+3}], v3 offset:{L_H}
    ds_read_b128 v[{XB+4}:{XB+7}], v3 offset:{L_H+16}
    s_lshl_b32 s38, {sHead}, 16""")
    srd(20, "s68", "s69", None, 1792*1024)
    a(f"""v_lshlrev_b32 v4, 14, v21
    v_lshl_add_u32 v4, v20, 4, v4
    s_waitcnt lgkmcnt(0)""")
    YA = 128
    for tb in range(4):
        for tt in range(4):
            for cb in range(4):
                r = WQ + 16*tt + 4*cb
                a(f"buffer_load_dwordx4 v[{r}:{r+3}], v4, s[20:23], s38 offen offset:{tt*1024+cb*256} {wpol}")
        a("s_add_u32 s38, s38, 4096")
        for tt in range(4):
            t = tb*4 + tt
            buildA(XB + t//2, t % 2, t % 2, 16)
            a(f"s_waitcnt vmcnt({12-4*tt})\ns_nop 0")
            for cb in range(4):
                r = WQ + 16*tt + 4*cb
                c = "0" if t == 0 else f"v[{YA+4*cb}:{YA+4*cb+3}]"
                a(f"v_mfma_f32_16x16x32_bf16 v[{YA+4*cb}:{YA+4*cb+3}], v[{HA+4*(t%2)}:{HA+4*(t%2)+3}], v[{r}:{r+3}], {c}")
    a(f"""v_lshrrev_b32 v4, 1, v20
    v_lshlrev_b32 v4, 16, v4
    v_and_b32 v5, 1, v20
    v_lshl_add_u32 v4, v5, 6, v4
    v_lshl_add_u32 v4, v21, 5, v4
    s_lshl_b32 s38, {sHead}, 7
    s_add_u32 s38, s38, {WS_H2 + 256*128}
    s_nop 2""")
    for cb in range(4):
        publish4(YA + 4*cb, "v4", "s38")
        if cb < 3: a(f"s_add_u32 s38, s38, {8*65536}")
    a("L_noffn:")
    stamp(7)
    a("L_end:\ns_endpgm")

    body = "\n".join(a.o)
    hdr = open("cdna_kernels/" + NAME + ".s.ref").read().split("; @launch")[0]
    out = hdr + f"; @launch grid=(256,1,1) block=(320,1,1) lds={LDS_BYTES}\n"
    out += f""".amdgcn_target "amdgcn-amd-amdhsa--gfx950"
.text
.globl {NAME}_kernel
.p2align 8
.type {NAME}_kernel,@function
{NAME}_kernel:
{body}
.section .rodata,"a"
.p2align 6
.amdhsa_kernel {NAME}_kernel
  .amdhsa_next_free_vgpr 256
  .amdhsa_next_free_sgpr 102
  .amdhsa_accum_offset 256
  .amdhsa_group_segment_fixed_size 0
  .amdhsa_kernarg_size 96
  .amdhsa_user_sgpr_count 2
  .amdhsa_user_sgpr_kernarg_segment_ptr 1
  .amdhsa_system_sgpr_workgroup_id_x 1
.end_amdhsa_kernel
"""
    return out

if __name__ == "__main__":
    kw = json.loads(sys.argv[2]) if len(sys.argv) > 2 else {}
    open(sys.argv[1], "w").write(gen(**kw))
```

```python
import sys, subprocess

META = """
.amdgpu_metadata
---
amdhsa.version: [1, 2]
amdhsa.kernels:
  - .name: {name}
    .symbol: {name}.kd
    .kernarg_segment_size: 96
    .kernarg_segment_align: 8
    .group_segment_fixed_size: 0
    .private_segment_fixed_size: 0
    .wavefront_size: 64
    .sgpr_count: {sgpr}
    .vgpr_count: {vgpr}
    .max_flat_workgroup_size: {wg}
    .args:
      - {{.name: kernargs, .size: 96, .offset: 0, .value_kind: by_value}}
...
.end_amdgpu_metadata
"""

def gen(W=16, G=256, S=2, L=4, pol="nt", kmap="lin", part="wint", hmap="div", vg=None, vx=0, hs=32):
    SPH = G // hs
    region = (512 << 20) // hs
    chunk = region // SPH
    tile = L * 1024
    ntiles_wg = chunk // tile
    iters = ntiles_wg // W
    assert iters % S == 0 and iters >= S
    o = []
    a = o.append
    a('.amdgcn_target "amdgcn-amd-amdhsa--gfx950"')
    a('.text\n.globl stream_kernel\n.p2align 8\n.type stream_kernel,@function\nstream_kernel:')
    a('s_memrealtime s[40:41]')
    a('s_load_dwordx4 s[4:7], s[0:1], 8')
    a('s_load_dwordx2 s[36:37], s[0:1], 88')
    import math
    lg = int(math.log2(SPH))
    if hmap == "div":
        a(f's_lshr_b32 s20, s2, {lg}')
        a(f's_and_b32 s21, s2, {SPH-1}')
    else:
        a(f's_and_b32 s20, s2, {hs-1}')
        a(f's_lshr_b32 s21, s2, {int(math.log2(hs))}')
    a('v_lshrrev_b32 v1, 6, v0')
    a('s_nop 0')
    a('v_readfirstlane_b32 s22, v1')
    a('v_and_b32 v2, 63, v0')
    a('v_lshlrev_b32 v3, 4, v2')
    if kmap == "lin":
        a('v_mov_b32 v4, v3')
    else:
        a('v_and_b32 v5, 3, v2')
        a('v_bfe_u32 v6, v2, 2, 2')
        a('v_lshrrev_b32 v7, 4, v2')
        a('v_lshlrev_b32 v4, 8, v6')
        a('v_lshl_add_u32 v4, v7, 6, v4')
        a('v_lshl_add_u32 v4, v5, 4, v4')
    a('s_waitcnt lgkmcnt(0)')
    a(f's_mul_i32 s23, s20, {region}')
    a(f's_add_u32 s8, s4, s23\ns_addc_u32 s9, s5, 0\ns_mov_b32 s10, {region}\ns_mov_b32 s11, 0x20000')
    a(f's_add_u32 s12, s6, s23\ns_addc_u32 s13, s7, 0\ns_mov_b32 s14, {region}\ns_mov_b32 s15, 0x20000')
    if part == "wint":
        a(f's_mul_i32 s24, s21, {chunk}')
        a(f's_mul_i32 s25, s22, {tile}')
        a('s_add_u32 s24, s24, s25')
        step = W * tile
    elif part == "wcont":
        a(f's_mul_i32 s24, s21, {chunk}')
        a(f's_mul_i32 s25, s22, {chunk // W}')
        a('s_add_u32 s24, s24, s25')
        step = tile
    elif part == "gint":
        a(f's_mul_i32 s24, s21, {W * tile}')
        a(f's_mul_i32 s25, s22, {tile}')
        a('s_add_u32 s24, s24, s25')
        step = SPH * W * tile
    base = 8
    def loads(st):
        r = base + st * 8 * L
        for i in range(L):
            off = (i * 1024) % 4096
            so = 's24' if i < 4 else 's26'
            a(f'buffer_load_dwordx4 v[{r+4*i}:{r+4*i+3}], v4, s[8:11], {so} offen offset:{off} {pol}')
        r += 4 * L
        a(f's_xor_b32 s28, s24, {vx}')
        a(f's_xor_b32 s29, s26, {vx}')
        for i in range(L):
            off = (i * 1024) % 4096
            so = 's28' if i < 4 else 's29'
            a(f'buffer_load_dwordx4 v[{r+4*i}:{r+4*i+3}], v3, s[12:15], {so} offen offset:{off} {pol}')
        a(f's_add_u32 s24, s24, {step}')
        a(f's_add_u32 s26, s24, 4096')
    a('s_add_u32 s26, s24, 4096')
    for st in range(S):
        loads(st)
    a(f's_mov_b32 s27, {iters // S - 1}')
    a('s_cmp_eq_u32 s27, 0')
    a('s_cbranch_scc1 L_tail')
    a('L_loop:')
    for st in range(S):
        a(f's_waitcnt vmcnt({2*L*(S-1)})')
        r = base + st * 8 * L
        a(f'v_or_b32 v5, v{r}, v5')
        loads(st)
    a('s_sub_u32 s27, s27, 1')
    a('s_cmp_lg_u32 s27, 0')
    a('s_cbranch_scc1 L_loop')
    a('L_tail:')
    a('s_waitcnt vmcnt(0)')
    a('s_barrier')
    a('s_memrealtime s[42:43]')
    a('s_cmp_lg_u32 s22, 0')
    a('s_cbranch_scc1 L_end')
    a('s_waitcnt lgkmcnt(0)')
    a('v_mov_b32 v8, s40\nv_mov_b32 v9, s41\nv_mov_b32 v10, s42\nv_mov_b32 v11, s43')
    a('s_lshl_b32 s28, s2, 4')
    a('v_mov_b32 v12, s28')
    a('v_cmp_eq_u32 vcc, 0, v2')
    a('s_and_saveexec_b64 s[30:31], vcc')
    a('global_store_dwordx4 v12, v[8:11], s[36:37]')
    a('L_end:')
    a('s_endpgm')
    nv = base + S * 8 * L
    if vg: nv = max(nv, vg)
    nv = (nv + 7) // 8 * 8
    a(f'''.section .rodata,"a"
.p2align 6
.amdhsa_kernel stream_kernel
  .amdhsa_next_free_vgpr {nv}
  .amdhsa_next_free_sgpr 48
  .amdhsa_accum_offset {min(nv,256)}
  .amdhsa_group_segment_fixed_size 0
  .amdhsa_kernarg_size 96
  .amdhsa_user_sgpr_count 2
  .amdhsa_user_sgpr_kernarg_segment_ptr 1
  .amdhsa_system_sgpr_workgroup_id_x 1
.end_amdhsa_kernel''')
    a(META.format(name="stream_kernel", sgpr=48, vgpr=nv, wg=64 * W))
    return "\n".join(o)

def build(name, **kw):
    lds = kw.pop("lds", 0)
    src = gen(**kw)
    open(name + ".s", "w").write(src)
    r = subprocess.run(["clang", "-x", "assembler", "-target", "amdgcn-amd-amdhsa", "-mcpu=gfx950", name + ".s", "-o", name + ".co"], capture_output=True, text=True)
    if r.returncode: print(r.stderr); sys.exit(1)
    return f"bench/{name}.co:stream_kernel:{kw.get('G',256)}:{64*kw.get('W',16)}:{lds}"

if __name__ == "__main__":
    import json
    specs = json.loads(sys.argv[1])
    out = []
    for s in specs:
        nm = "st_" + "_".join(f"{k}{str(v).replace(' ','')}" for k, v in s.items())
        out.append(build(nm, **s))
    print(" ".join(out))
    print(json.dumps(["bench/cmd.txt", "bench/bench_host"] + [x.split(":")[0] for x in out]))
```
